```python
import torch

def _softmax(x, axis=-1):
    return torch.softmax(x, dim=axis)

def _gelu(x):
    return torch.nn.functional.gelu(x, approximate='tanh')

def _silu(x):
    return torch.nn.functional.silu(x)

def _sigmoid(x):
    return torch.sigmoid(x)

def _layernorm(x, axis=-1, eps=1e-05):
    m = x.mean(dim=axis, keepdim=True)
    v = x.var(dim=axis, keepdim=True, unbiased=False)
    return (x - m) / torch.sqrt(v + eps)

def _scatter_add(tgt, idx, src, axis=0):
    return tgt.clone().index_add_(axis, idx, src)

def _segment_sum(src, seg, n):
    out = torch.zeros((n,) + src.shape[1:], dtype=src.dtype)
    return out.index_add_(0, seg, src)

def _pad(x, pw):
    flat = tuple((v for pair in reversed(pw) for v in pair))
    return torch.nn.functional.pad(x, flat)
kernel_name = 'adaLN_cond__sliding_block_cached__geglu_ffn__decode'

def setup_inputs():

    _w = lambda a: (lambda t: t.to(torch.bfloat16) if t.is_floating_point() else t)(torch.as_tensor(a))

    def _A_setup():
        B, Sq, D = (4, 1, 512)
        Hq, Hkv, Sk, Dh = (32, 8, 16384, 128)
        assert Hq % Hkv == 0, (Hq, Hkv)
        return {'x': _w((lambda *s: torch.randn(*s, dtype=torch.bfloat16) * 0.05)(B, Sq, D)), 'k_cache': _w((lambda *s: torch.randn(*s, dtype=torch.bfloat16) * 1.6)(B, Hkv, Sk, Dh)), 'v_cache': _w((lambda *s: torch.randn(*s, dtype=torch.bfloat16) * 1.6)(B, Hkv, Sk, Dh)), 'wq': _w((lambda *s: torch.randn(*s, dtype=torch.bfloat16) * 1.6)(D, Hq * Dh) * D ** (-0.5)), 'wo': _w((lambda *s: torch.randn(*s, dtype=torch.bfloat16) * 1.6)(Hq * Dh, D) * (Hq * Dh) ** (-0.5))}
    _A_in = _A_setup()

    def _B_setup():
        B, S, D, F = (4, 1, 512, 1792)
        return {'x': _w((lambda *s: torch.randn(*s, dtype=torch.bfloat16) * 0.05)(B, S, D)), 'w_gate': _w((lambda *s: torch.randn(*s, dtype=torch.bfloat16) * 0.05)(D, F)), 'w_up': _w((lambda *s: torch.randn(*s, dtype=torch.bfloat16) * 0.05)(D, F)), 'w_down': _w((lambda *s: torch.randn(*s, dtype=torch.bfloat16) * 0.05)(F, D))}
    _B_in = _B_setup()
    return {'A_x': _A_in['x'], 'A_k_cache': _A_in['k_cache'], 'A_v_cache': _A_in['v_cache'], 'A_wq': _A_in['wq'], 'A_wo': _A_in['wo'], 'B_x': _B_in['x'], 'B_w_gate': _B_in['w_gate'], 'B_w_up': _B_in['w_up'], 'B_w_down': _B_in['w_down'], 'c': _w((lambda *s: torch.randn(*s, dtype=torch.bfloat16) * 0.2)(4, 512) * 8.0), 'w_mod': _w((lambda *s: torch.randn(*s, dtype=torch.bfloat16) * 0.2)(512, 6 * 512) * 512 ** (-0.5) * 8.0)}

def reference(A_x, A_k_cache, A_v_cache, A_wq, A_wo, B_x, B_w_gate, B_w_up, B_w_down, c, w_mod):

    def _A_ref(x, k_cache, v_cache, wq, wo):
        B, Sq, D = x.shape
        Hq, Dh = (32, 128)
        Hkv, Sk = (k_cache.shape[1], k_cache.shape[2])
        W = min(4096, max(256, Sk // 4))
        rep = Hq // Hkv
        q = (lambda x, *d: x.permute(*d))((x @ wq).reshape(B, Sq, Hq, Dh), 0, 2, 1, 3)
        k = (lambda x, n, axis: torch.repeat_interleave(x, n, dim=axis))(k_cache[:, :, Sk - W:, :], rep, axis=1)
        v = (lambda x, n, axis: torch.repeat_interleave(x, n, dim=axis))(v_cache[:, :, Sk - W:, :], rep, axis=1)
        scores = torch.einsum('bhqd,bhkd->bhqk', q, k) * Dh ** (-0.5)
        p = _softmax(scores, axis=-1)
        o = torch.einsum('bhqk,bhkd->bhqd', p, v)
        return (lambda x, *d: x.permute(*d))(o, 0, 2, 1, 3).reshape(B, Sq, Hq * Dh) @ wo

    def _B_ref(x, w_gate, w_up, w_down):
        return _gelu(x @ w_gate) * (x @ w_up) @ w_down
    x = A_x
    mod = (_silu(c) @ w_mod).reshape(c.shape[0], 6, 1, -1)
    sa, ca, ga, sb, cb, gb = (mod[:, 0].clone(), mod[:, 1].clone(), mod[:, 2].clone(), mod[:, 3].clone(), mod[:, 4].clone(), mod[:, 5].clone())
    h = _layernorm(x, axis=-1) * (1 + ca) + sa
    x = x + ga * _A_ref(h, A_k_cache, A_v_cache, A_wq, A_wo)
    h = _layernorm(x, axis=-1) * (1 + cb) + sb
    x = x + gb * _B_ref(h, B_w_gate, B_w_up, B_w_down)
    return x
```

```python
import re

TRANS = ("v_exp_f32", "v_log_f32", "v_rcp_f32", "v_rsq_f32", "v_sqrt_f32", "v_sin_f32", "v_cos_f32")

_reg_re = re.compile(r"^(-|\|)?([vsa])(\d+)\|?$")
_rng_re = re.compile(r"^(-|\|)?([vsa])\[(\d+):(\d+)\]\|?$")


def regs_of(tok):
    tok = tok.strip()
    m = _reg_re.match(tok)
    if m:
        return [(m.group(2), int(m.group(3)))]
    m = _rng_re.match(tok)
    if m:
        return [(m.group(2), i) for i in range(int(m.group(3)), int(m.group(4)) + 1)]
    if tok == "vcc":
        return [("vcc", 0), ("vcc", 1)]
    if tok == "vcc_lo":
        return [("vcc", 0)]
    if tok == "vcc_hi":
        return [("vcc", 1)]
    if tok == "exec":
        return [("exec", 0), ("exec", 1)]
    if tok == "exec_lo":
        return [("exec", 0)]
    if tok == "exec_hi":
        return [("exec", 1)]
    if tok == "m0":
        return [("m0", 0)]
    return []


class Ins:
    __slots__ = ("text", "op", "cls", "w", "r", "srcA", "srcB", "srcC", "dpp", "lds", "target", "store_data",
                 "pre", "label", "states", "sdwa")

    def __init__(self, text):
        self.text = text
        self.label = None
        self.pre = 0
        self.target = None
        self.srcA = self.srcB = self.srcC = ()
        self.store_data = ()
        self.dpp = False
        self.lds = False
        self.sdwa = False
        self.states = 1
        t = text.split(";")[0].strip()
        parts = t.split(None, 1)
        op = parts[0]
        self.op = op
        rest = parts[1] if len(parts) > 1 else ""
        ops = []
        cur = ""
        depth = 0
        for ch in rest:
            if ch in "[(":
                depth += 1
            if ch in "])":
                depth -= 1
            if ch == "," and depth == 0:
                ops.append(cur.strip())
                cur = ""
            else:
                cur += ch
        mods = ""
        if cur.strip():
            last = cur.strip().split(None, 1)
            ops.append(last[0])
            mods = last[1] if len(last) > 1 else ""
        R = [regs_of(o) for o in ops]
        w, r = [], []
        if op.startswith("v_mfma"):
            self.cls = "mfma"
            w = R[0]
            self.srcA, self.srcB, self.srcC = tuple(R[1]), tuple(R[2]), tuple(R[3])
            r = R[1] + R[2] + R[3]
            assert "16x16x32_bf16" in op or "16x16x16" in op, op
        elif op.startswith("v_"):
            self.cls = "valu"
            self.dpp = "_dpp" in op or "row_" in mods or "quad_perm" in mods
            self.sdwa = "_sdwa" in op or "op_sel:" in mods
            assert not op.startswith("v_cmpx")
            if "swap" in op:
                w = R[0] + R[1]
                r = R[0] + R[1]
            elif op.startswith(("v_add_co", "v_sub_co", "v_addc_co", "v_subb_co")):
                w = R[0] + R[1]
                r = sum(R[2:], [])
            else:
                w = R[0]
                r = sum(R[1:], [])
                if op.startswith(("v_fmac", "v_dot2c", "v_mac")) or self.dpp or op.startswith("v_writelane"):
                    r = r + R[0]
        elif op.startswith(("buffer_", "global_")):
            self.cls = "vmem"
            self.lds = (" lds" in " " + mods) or "_lds_" in op
            if "_load" in op and not self.lds:
                w = R[0]
                r = sum(R[1:], [])
                if "d16" in op:
                    r = r + R[0]
            else:
                r = sum(R, [])
                if self.lds:
                    r = r + [("m0", 0)]
                if "_store" in op and ("x4" in op or "x3" in op):
                    self.store_data = tuple(R[0] if op.startswith("buffer_") else R[1])
        elif op.startswith("ds_"):
            self.cls = "ds"
            if op.startswith("ds_read") or "_rtn" in op or "permute" in op or "swizzle" in op:
                w = R[0]
                r = sum(R[1:], [])
            else:
                r = sum(R, [])
        elif op.startswith("s_"):
            if op.startswith(("s_load", "s_memrealtime", "s_memtime", "s_buffer_load")):
                self.cls = "smem"
                w = R[0]
                r = sum(R[1:], [])
            else:
                self.cls = "salu"
                if op.startswith(("s_cbranch", "s_branch")):
                    self.target = ops[0]
                elif op.startswith(("s_cmp", "s_bitcmp", "s_waitcnt", "s_barrier", "s_endpgm", "s_setprio", "s_sleep",
                                    "s_nop")):
                    r = sum(R, [])
                    if op == "s_nop":
                        self.states = int(ops[0], 0) + 1
                else:
                    w = R[0]
                    r = sum(R[1:], [])
                    if "saveexec" in op:
                        w = w + [("exec", 0), ("exec", 1)]
        else:
            raise ValueError("unknown op " + text)
        self.w = frozenset(w)
        self.r = frozenset(r)


def need(p, c):
    n = 0
    pw = p.w
    if p.cls == "valu":
        sw = {x for x in pw if x[0] in ("s", "vcc")}
        vw = {x for x in pw if x[0] in ("v", "a")}
        if sw & c.r:
            if c.cls == "vmem":
                n = max(n, 5)
            elif c.cls in ("valu", "mfma"):
                n = max(n, 4 if c.op.startswith(("v_readlane", "v_writelane")) else 2)
        if vw & c.r:
            if c.cls == "mfma":
                n = max(n, 2)
            elif c.cls == "valu":
                if c.dpp or "permlane" in c.op:
                    n = max(n, 2)
                if c.op.startswith(("v_readlane", "v_readfirstlane")):
                    n = max(n, 1)
                if p.op.startswith(TRANS) or p.sdwa:
                    n = max(n, 1)
            if p.op.startswith(TRANS):
                n = max(n, 1)
        if p.op.startswith("v_dot"):
            if vw & (c.r | c.w):
                same_c = False
                if c.op == p.op:
                    toks = c.text.split(";")[0].split(None, 1)[1].split(",")
                    ab = set(regs_of(toks[1])) | set(regs_of(toks[2].split()[0]))
                    same_c = not (vw & ab)
                if not same_c:
                    n = max(n, 3)
    if p.cls == "salu" and ("m0", 0) in pw and c.cls == "vmem" and c.lds:
        n = max(n, 1)
    if p.store_data:
        if set(p.store_data) & c.w:
            n = max(n, 2)
    if p.cls == "mfma":
        if c.cls == "mfma":
            if pw & (set(c.srcA) | set(c.srcB)):
                n = max(n, 8)
            if pw & set(c.srcC):
                if frozenset(c.srcC) != pw:
                    n = max(n, 6)
            elif pw & c.w:
                n = max(n, 8)
        else:
            if pw & (c.r | c.w):
                n = max(n, 8)
            if set(p.srcC) & c.w:
                n = max(n, 3)
    return n


class Asm:
    def __init__(self):
        self.ins = []
        self.pending_labels = []
        self.nlab = 0

    def __call__(self, text):
        for line in text.split("\n"):
            line = line.strip()
            if not line:
                continue
            i = Ins(line)
            if self.pending_labels:
                i.label = self.pending_labels
                self.pending_labels = []
            self.ins.append(i)

    def label(self, name):
        self.pending_labels.append(name)

    def newlabel(self, stem="L"):
        self.nlab += 1
        return f"{stem}_{self.nlab}"

    def finish(self):
        ins = self.ins
        assert not self.pending_labels
        lab = {}
        for k, i in enumerate(ins):
            for l in i.label or ():
                assert l not in lab, l
                lab[l] = k
        preds = [[] for _ in ins]
        for k, i in enumerate(ins):
            if i.target is not None:
                assert i.target in lab, i.target
                preds[lab[i.target]].append(k)
            if k + 1 < len(ins) and i.op not in ("s_branch", "s_endpgm"):
                preds[k + 1].append(k)
        MAXD = 8
        for k, c in enumerate(ins):
            req = 0
            stack = [(p, 0) for p in preds[k]]
            seen = {}
            while stack:
                p, d = stack.pop()
                if d >= MAXD:
                    continue
                if p in seen and seen[p] <= d:
                    continue
                seen[p] = d
                n = need(ins[p], c)
                if n - d > req:
                    req = n - d
                nd = d + ins[p].states + ins[p].pre
                for q in preds[p]:
                    stack.append((q, nd))
            c.pre = req
        out = []
        for i in ins:
            for l in i.label or ():
                out.append(l + ":")
            if i.pre:
                out.append(f"    s_nop {i.pre - 1}")
            out.append("    " + i.text)
        return out
```

```python
import sys, struct
from asmlib import Asm

KNAME = "adaLN_cond__sliding_block_cached__geglu_ffn__decode"

WS_MOD = 0x0
WS_G = 0x10000
G_Q, G_ML, G_O, G_X1, G_GL, G_U, G_XT, G_AP, G_OPT = 0x0, 0x1000, 0x2000, 0x3000, 0x4000, 0x4800, 0x5000, 0x6000, 0xA000
G_SIZE = 0xC000
WS_OP = 0x100000
WS_ST = 0x400000
WS_SIZE = 0x800000
SM, W0, VL = 0x0, 0x4000, 0x14000
RED1, RED_GU, QL, PL, FL = SM, SM + 0x1000, SM + 0x1800, SM + 0x1C00, SM + 0x2C00
F_KDONE, F_CLR, F_J1, F_J2, F_VPUB, F_WD, F_GO, F_JF, F_MODE, F_KHALF = [FL + o for o in (
    0, 0x10, 0x20, 0x30, 0x40, 0x50, 0x60, 0x70, 0x74, 0x78)]
WDN = W0 + 0x8000
LDS_SIZE = 0x1C000

WS, SC_, SA_, SB_, SX_, SOUT = [f"s[{r}:{r+3}]" for r in range(32, 56, 4)]
DBG = SC_
SRDN = dict(WS=32, SC_=36, DBG=36, SA_=40, SB_=44, SX_=48, SOUT=52)
KARG = dict(x=4, k=6, v=8, wq=10, wo=12, wg=16, wu=18, wd=20, c=22, wmod=24, out=26, dbg=28, ws=30)
sX, sJ, sB, sS, sW, sG, sCNT, sMODE = [f"s{r}" for r in range(72, 80)]
T = [f"s{r}" for r in range(80, 92)] + [f"s{r}" for r in range(56, 72)]
FULL = "s[92:93]"
MA, MB_, MC = "s[94:95]", "s[96:97]", "s[98:99]"
LIM_G = 40000
LIM_L = 400000


def f32(x):
    return "0x%08x" % struct.unpack("<I", struct.pack("<f", x))[0]


LOG2E = 1.4426950408889634


def v(n, c=1):
    return f"v{n}" if c == 1 else f"v[{n}:{n+c-1}]"


class Gen:
    def __init__(self, **o):
        self.o = dict(depth=6, kpre=2, rotmul=9, stamps=0, force_slow=0, wpol="nt", dry=0, noop=0, nog=0, nojan=0,
                      so=0, dm=3, rx=9, rb=8, rs=5, blocked=0, wdepth=8, hold_j=1, hold_m=1, early=12, vdepth=0)
        self.o.update(o)
        self.A = Asm()
        self.deferred = []
        self.nstamp = 0

    def srd(self, name, karg, size):
        A = self.A
        r = SRDN[name]
        k = KARG[karg]
        A(f"s_mov_b32 s{r}, s{k}")
        A(f"s_mov_b32 s{r+1}, s{k+1}")
        A(f"s_mov_b32 s{r+2}, {size:#x}")
        A(f"s_mov_b32 s{r+3}, 0x20000")

    def lane_addr(self, dst, tmp, terms, lane=1):
        A = self.A
        first = True
        for lsb, width, sh in terms:
            if first:
                A(f"v_bfe_u32 v{dst}, v{lane}, {lsb}, {width}")
                if sh:
                    A(f"v_lshlrev_b32 v{dst}, {sh}, v{dst}")
                first = False
            else:
                A(f"v_bfe_u32 v{tmp}, v{lane}, {lsb}, {width}")
                A(f"v_lshl_add_u32 v{dst}, v{tmp}, {sh}, v{dst}")

    def stamp(self, idx):
        if self.o["stamps"]:
            self.A(f"s_memrealtime s[{4+2*idx}:{5+2*idx}]")

    def stamp_init(self):
        if self.o["stamps"]:
            for i in range(1, 14):
                self.A(f"s_mov_b32 s{4+2*i}, 0")
            self.A("s_mov_b32 s4, s100")

    def stamp_flush(self):
        if not self.o["stamps"]:
            return
        A = self.A
        A("s_memrealtime s[30:31]")
        A("s_mov_b64 exec, 1")
        A("s_waitcnt lgkmcnt(0)")
        A(f"s_mul_i32 {T[0]}, s2, 12")
        A(f"s_add_u32 {T[0]}, {T[0]}, s3")
        A(f"s_lshl_b32 {T[0]}, {T[0]}, 6")
        A(f"s_add_u32 {T[0]}, {T[0]}, {WS_ST:#x}")
        A("v_mov_b32 v20, 0")
        for q in range(4):
            for e in range(4):
                i = 4 * q + e
                A(f"v_mov_b32 v{16+e}, " + (f"s{4+2*i}" if i < 14 else "0"))
            A(f"buffer_store_dwordx4 v[16:19], v20, {WS}, {T[0]} offen offset:{16*q}")

    def maxtree(self, regs, dst):
        A = self.A
        regs = list(regs)
        if len(regs) == 1:
            return regs[0]
        if len(regs) == 2:
            A(f"v_max_u32 v{dst}, v{regs[0]}, v{regs[1]}")
            return dst
        A(f"v_max3_u32 v{dst}, v{regs[0]}, v{regs[1]}, v{regs[2]}")
        regs = regs[3:]
        while len(regs) >= 2:
            A(f"v_max3_u32 v{dst}, v{dst}, v{regs[0]}, v{regs[1]}")
            regs = regs[2:]
        if regs:
            A(f"v_max_u32 v{dst}, v{dst}, v{regs[0]}")
        return dst

    def poll(self, loads, regs, tmp, sent="-1", lds=False, restore=FULL):
        A = self.A
        L, D = A.newlabel("P"), A.newlabel("PD")
        A(f"s_mov_b32 {sCNT}, {LIM_L if lds else LIM_G}")
        A.label(L)
        for l in loads:
            A(l)
        A("s_waitcnt lgkmcnt(0)" if lds else "s_waitcnt vmcnt(0)")
        m = self.maxtree(regs, tmp)
        A(f"v_cmp_eq_u32 vcc, {sent}, v{m}")
        A(f"s_cbranch_vccz {D}")
        if not lds:
            A("s_mov_b64 exec, vcc")
        A(f"s_sub_u32 {sCNT}, {sCNT}, 1")
        A(f"s_cbranch_scc0 {L}")
        A.label(D)
        if not lds:
            A(f"s_mov_b64 exec, {restore}")
        else:
            A("s_nop 0")

    def lds_wait(self, addr, n, va, vt):
        A = self.A
        A(f"v_mov_b32 v{va}, {addr:#x}")
        if n == 1:
            self.poll([f"ds_read_b32 v{vt}, v{va}"], [vt], vt + 1, lds=True)
        else:
            self.poll([f"ds_read_b128 {v(vt,4)}, v{va}"], list(range(vt, vt + 4)), vt + 4, lds=True)

    def lds_wait_w(self, base, va, vt):
        A = self.A
        A(f"s_lshl_b32 {T[11]}, {sW}, 2")
        A(f"s_add_u32 {T[11]}, {T[11]}, {base:#x}")
        A(f"v_mov_b32 v{va}, {T[11]}")
        self.poll([f"ds_read_b32 v{vt}, v{va}"], [vt], vt + 1, lds=True)

    def lds_set_w(self, base, va, vt):
        A = self.A
        A(f"s_lshl_b32 {T[11]}, {sW}, 2")
        A(f"s_add_u32 {T[11]}, {T[11]}, {base:#x}")
        A(f"v_mov_b32 v{va}, {T[11]}")
        A(f"v_mov_b32 v{vt}, 1")
        A(f"ds_write_b32 v{va}, v{vt}")

    def pub(self, stores):
        A = self.A
        if self.o["force_slow"]:
            for s in stores:
                A(s + " sc1")
            return
        Ls, Lb = A.newlabel("SLOW"), A.newlabel("BACK")
        A(f"s_cmp_eq_u32 {sMODE}, 1")
        A(f"s_cbranch_scc0 {Ls}")
        for s in stores:
            A(s)
        A.label(Lb)
        A("s_nop 0")
        self.deferred.append((Ls, [s + " sc1" for s in stores], Lb))

    def get_mode(self, va, vt):
        A = self.A
        self.lds_wait(F_MODE, 1, va, vt)
        A(f"v_readfirstlane_b32 {sMODE}, v{vt}")

    def rbf(self, d, s):
        self.A(f"v_cvt_pk_bf16_f32 v{d}, 0, v{s}")

    def selreduce(self, a, out):
        A = self.A
        for p in (0, 2):
            for k in range(4):
                A(f"v_permlane16_swap_b32 v{a[k]+p}, v{a[k]+p+1}")
        A(f"v_add_f32 v{a[0]}, v{a[0]}, v{a[1]+1}")
        A(f"v_add_f32 v{a[0]+2}, v{a[0]+2}, v{a[1]+3}")
        A(f"v_add_f32 v{a[2]}, v{a[2]}, v{a[3]+1}")
        A(f"v_add_f32 v{a[2]+2}, v{a[2]+2}, v{a[3]+3}")
        A(f"v_permlane32_swap_b32 v{a[0]}, v{a[0]+2}")
        A(f"v_permlane32_swap_b32 v{a[2]}, v{a[2]+2}")
        A(f"v_add_f32 v{out}, v{a[0]}, v{a[2]+2}")

    def treduce(self, r, out):
        A = self.A
        A(f"v_permlane32_swap_b32 v{r}, v{r+2}")
        A(f"v_permlane32_swap_b32 v{r+1}, v{r+3}")
        A(f"v_add_f32 v{r}, v{r}, v{r+2}")
        A(f"v_add_f32 v{r+1}, v{r+1}, v{r+3}")
        A(f"v_permlane16_swap_b32 v{r}, v{r+1}")
        A(f"v_add_f32 v{out}, v{r}, v{r+1}")

    def allred(self, op, r, t, rows=True):
        A = self.A
        A(f"{op}_dpp v{r}, v{r}, v{r} row_ror:4 row_mask:0xf bank_mask:0xf")
        A(f"{op}_dpp v{r}, v{r}, v{r} row_ror:8 row_mask:0xf bank_mask:0xf")
        if rows:
            for sw in ("v_permlane32_swap_b32", "v_permlane16_swap_b32"):
                A(f"v_mov_b32 v{t}, v{r}")
                A(f"{sw} v{t}, v{r}")
                A(f"{op} v{r}, v{r}, v{t}")

    def unpack(self, src, dst, n=4):
        A = self.A
        for p in range(n):
            A(f"v_lshlrev_b32 v{dst+2*p}, 16, v{src+p}")
            A(f"v_and_b32 v{dst+2*p+1}, 0xffff0000, v{src+p}")

    def ln(self, X, ONE, D, t, out):
        A = self.A
        for i in range(4):
            A(f"v_mfma_f32_16x16x32_bf16 {v(D,4)}, {v(ONE,4)}, {v(X+4*i,4)}, " + ("0" if i == 0 else v(D, 4)))
        for i in range(16):
            q = t + (i & 1)
            A(f"v_dot2_f32_bf16 v{q}, v{X+i}, v{X+i}, " + ("0" if i < 2 else f"v{q}"))
        self.unpack(X, out)
        A(f"v_add_f32 v{t}, v{t}, v{t+1}")
        self.allred("v_add_f32", D, t + 1, rows=False)
        self.allred("v_add_f32", t, t + 1)
        A(f"v_mul_f32 v{D}, {f32(1/512)}, v{D}")
        self.rbf(t + 2, D)
        A(f"v_mul_f32 v{D+1}, v{D}, v{D}")
        A(f"v_mul_f32 v{t}, {f32(1/512)}, v{t}")
        A(f"v_sub_f32 v{t}, v{t}, v{D+1}")
        A(f"v_max_f32 v{t}, 0, v{t}")
        self.rbf(t, t)
        A(f"v_add_f32 v{t}, {f32(1e-5)}, v{t}")
        self.rbf(t, t)
        A(f"v_sqrt_f32 v{t}, v{t}")
        for p in range(4):
            A(f"v_pk_add_f32 {v(out+2*p,2)}, {v(out+2*p,2)}, {v(t+2,2)} op_sel_hi:[1,0] neg_lo:[0,1] neg_hi:[0,1]")
        self.rbf(t, t)
        A(f"v_rcp_f32 v{t+4}, v{t}")
        for e in range(8):
            self.rbf(out + e, out + e)
        for p in range(4):
            A(f"v_pk_mul_f32 {v(out+2*p,2)}, {v(out+2*p,2)}, {v(t+4,2)} op_sel_hi:[1,0]")
        for e in range(8):
            self.rbf(out + e, out + e)

    def prep_mod(self, SH, SCL, sh_out, c1_out):
        A = self.A
        self.unpack(SCL, c1_out)
        self.unpack(SH, sh_out)
        for e in range(8):
            A(f"v_add_f32 v{c1_out+e}, 1.0, v{c1_out+e}")
        for e in range(8):
            self.rbf(c1_out + e, c1_out + e)

    def combine(self, LNV, C1, SH, out):
        A = self.A
        for p in range(4):
            A(f"v_pk_mul_f32 {v(LNV+2*p,2)}, {v(LNV+2*p,2)}, {v(C1+2*p,2)}")
        for e in range(8):
            self.rbf(LNV + e, LNV + e)
        for p in range(4):
            A(f"v_pk_add_f32 {v(LNV+2*p,2)}, {v(LNV+2*p,2)}, {v(SH+2*p,2)}")
        for p in range(4):
            A(f"v_cvt_pk_bf16_f32 v{out+p}, v{LNV+2*p}, v{LNV+2*p+1}")

    def dma(self, voff, srd, soff, ldsaddr_s, ldsconst):
        A = self.A
        A(f"s_add_u32 m0, {ldsaddr_s}, {ldsconst:#x}")
        pol = self.o["wpol"]
        A(f"buffer_load_dwordx4 v{voff}, {srd}, {soff} offen {pol} lds".replace("  ", " "))


    def mask(self, m, lo, hi=None):
        r = int(m[2:].split(":")[0])
        self.A(f"s_mov_b32 s{r}, {lo:#x}")
        self.A(f"s_mov_b32 s{r+1}, {(lo if hi is None else hi):#x}")

    def pack_dw(self, val, dst, t):
        A = self.A
        A(f"v_mov_b32_dpp v{t}, v{val} quad_perm:[1,0,3,2] row_mask:0xf bank_mask:0xf")
        A(f"v_cvt_pk_bf16_f32 v{dst}, v{val}, v{t}")

    def pack_x4(self, val, dst):
        A = self.A
        self.pack_dw(val, dst, dst + 1)
        for i in (1, 2, 3):
            A(f"v_mov_b32_dpp v{dst+i}, v{dst} row_shl:{2*i} row_mask:0xf bank_mask:0xf")

    def quad_x4(self, d):
        for i in (1, 2, 3):
            self.A(f"v_mov_b32_dpp v{d+i}, v{d} quad_perm:[{i},{i},{i},{i}] row_mask:0xf bank_mask:0xf")

    def silu(self):
        A = self.A
        self.unpack(164, 136)
        for e in range(8):
            A(f"v_mul_f32 v{144+e}, {f32(-LOG2E)}, v{136+e}")
        for e in range(8):
            A(f"v_exp_f32 v{144+e}, v{144+e}")
        for e in range(8):
            A(f"v_add_f32 v{144+e}, 1.0, v{144+e}")
        for e in range(8):
            A(f"v_rcp_f32 v{144+e}, v{144+e}")
        for e in range(8):
            A(f"v_mul_f32 v{136+e}, v{136+e}, v{144+e}")
        for p in range(4):
            A(f"v_cvt_pk_bf16_f32 v{16+p}, v{136+2*p}, v{137+2*p}")

    def qp_xt(self):
        A = self.A
        self.lds_wait(F_JF, 1, 4, 12)
        self.lane_addr(4, 5, [(2, 4, 8), (1, 1, 7), (0, 1, 4)])
        A(f"s_lshl_b32 {T[0]}, {sB}, 5")
        A(f"s_add_u32 {T[0]}, {T[0]}, {sG}")
        self.poll([f"buffer_load_dwordx4 v[16:19], v4, {WS}, {T[0]} offen offset:{G_Q} sc1"], [16, 17, 18, 19], 5)
        A("v_lshlrev_b32 v4, 4, v1")
        A(f"ds_write_b128 v4, v[16:19] offset:{QL}")
        self.stamp(4)
        A(f"s_getreg_b32 {T[1]}, hwreg(HW_REG_XCC_ID)")
        A(f"s_and_b32 {T[1]}, {T[1]}, 0xf")
        A(f"s_add_u32 {T[0]}, {sG}, {G_XT:#x}")
        self.lane_addr(4, 5, [(0, 5, 7)])
        self.poll([f"buffer_load_dword v20, v4, {WS}, {T[0]} offen sc1"], [20], 5)
        A(f"v_cmp_ne_u32 vcc, {T[1]}, v20")
        A("s_cmp_eq_u64 vcc, 0")
        A(f"s_cselect_b32 {T[1]}, 1, 0")
        A(f"v_mov_b32 v20, {T[1]}")
        A(f"v_mov_b32 v4, {F_MODE:#x}")
        A("ds_write_b32 v4, v20")

    def xsum(self, soffs, out):
        A = self.A
        n = len(soffs)
        self.poll([f"buffer_load_dwordx4 {v(16+4*i,4)}, v11, {WS}, {soffs[i]} offen sc1" for i in range(n)],
                  list(range(16, 16 + 4 * n)), 5)
        self.sum4(n)
        self.treduce(16, out)

    def sum4(self, n):
        A = self.A
        A("v_pk_add_f32 v[16:17], v[16:17], v[20:21]")
        A("v_pk_add_f32 v[18:19], v[18:19], v[22:23]")
        if n == 4:
            A("v_pk_add_f32 v[24:25], v[24:25], v[28:29]")
            A("v_pk_add_f32 v[26:27], v[26:27], v[30:31]")
            A("v_pk_add_f32 v[16:17], v[16:17], v[24:25]")
            A("v_pk_add_f32 v[18:19], v[18:19], v[26:27]")

    def dry_begin(self, name):
        A = self.A
        if self.o["dry"]:
            A(f"s_mov_b64 {FULL}, 0")
            A("s_mov_b64 exec, 0")
            A(f"s_branch {name}_body")
        A.label(f"{name}_real")

    def dry_end(self, name):
        A = self.A
        A.label(f"{name}_end")
        if self.o["dry"]:
            A("s_cmp_lg_u32 s92, 0")
            A("s_cbranch_scc1 L_fin")
            A(f"s_mov_b64 {FULL}, -1")
            A("s_mov_b64 exec, -1")
            A(f"s_branch {name}_real")
        else:
            A("s_branch L_fin")

    def chain(self):
        A = self.A
        A.label("L_chain")
        if self.o["so"] == 1:
            A("s_barrier")
            A("s_branch L_end")
            return
        A("s_setprio 3")
        self.lane_addr(2, 4, [(0, 2, 10), (2, 2, 6), (4, 2, 4)])
        self.lane_addr(3, 4, [(2, 2, 8), (5, 1, 7), (0, 2, 5), (4, 1, 4)])
        A("v_lshlrev_b32 v6, 3, v1")
        A("v_lshlrev_b32 v8, 1, v1")
        A("v_lshlrev_b32 v9, 2, v1")
        self.lane_addr(11, 4, [(0, 3, 4)])
        self.lane_addr(5, 4, [(4, 1, 5)])
        A("v_xor_b32 v11, v11, v5")
        A("v_lshrrev_b32 v10, 3, v1")
        self.lane_addr(7, 4, [(4, 2, 10), (2, 2, 7), (0, 2, 3), (3, 2, 5)])
        A(f"s_cmp_ge_u32 {sJ}, 16")
        A("s_cbranch_scc1 L_chainA")
        self.chainB()
        self.chainA()

    def chainB(self):
        A = self.A
        WD = self.o["wdepth"]
        for i in range(4):
            A(f"s_add_u32 {T[4+i]}, {sW}, {i}")
            A(f"s_and_b32 {T[4+i]}, {T[4+i]}, 3")
            A(f"s_lshl_b32 {T[4+i]}, {T[4+i]}, 8")
        A(f"s_lshl_b32 {T[8]}, {sW}, 10")
        A(f"s_lshl_b32 {T[9]}, {sW}, 14")
        A(f"s_lshl_b32 {T[10]}, {sW}, 7")
        A(f"s_cmp_lt_u32 {sJ}, 2")
        A("s_cbranch_scc1 B_jan")
        A(f"s_sub_u32 {T[0]}, {sJ}, 4")
        A(f"s_cmp_lt_u32 {T[0]}, 8")
        A("s_cbranch_scc1 B_isq")
        A(f"s_lshl_b32 {T[0]}, {sX}, 1")
        A(f"s_add_u32 {T[0]}, {T[0]}, {sJ}")
        A(f"s_sub_u32 {T[0]}, {T[0]}, 2")
        A(f"s_lshl_b32 {T[1]}, {sX}, 2")
        A(f"s_add_u32 {T[1]}, {T[1]}, {sJ}")
        A(f"s_add_u32 {T[1]}, {T[1]}, 4")
        A(f"s_cmp_lt_u32 {sJ}, 4")
        A(f"s_cselect_b32 {T[0]}, {T[0]}, {T[1]}")
        A(f"s_movk_i32 {T[12]}, 6144")
        A(f"s_lshl_b32 {T[1]}, {T[0]}, 7")
        A(f"s_lshl_b32 {T[13]}, {T[0]}, 9")
        A(f"s_mov_b32 {T[14]}, 1")
        A("s_waitcnt lgkmcnt(0)")
        self.srd("SA_", "wmod", 512 * 3072 * 2)
        A("s_branch B_t64")
        A.label("B_isq")
        A(f"s_movk_i32 {T[12]}, 8192")
        A(f"s_lshl_b32 {T[1]}, {sX}, 10")
        A(f"s_lshl_b32 {T[2]}, {T[0]}, 7")
        A(f"s_add_u32 {T[1]}, {T[1]}, {T[2]}")
        A(f"s_lshl_b32 {T[13]}, {T[0]}, 9")
        A(f"s_add_u32 {T[13]}, {T[13]}, {sG}")
        A(f"s_mov_b32 {T[14]}, 0")
        A("s_waitcnt lgkmcnt(0)")
        self.srd("SA_", "wq", 4096 * 512 * 2)
        A.label("B_t64")
        self.srd("SX_", "x", 4096)
        self.srd("SC_", "c", 4096)
        A(f"v_mul_u32_u24 v10, {T[12]}, v10")
        A("v_add_u32 v10, v10, v11")
        A("v_xor_b32 v11, 64, v10")
        A(f"s_mul_i32 {T[2]}, {T[10]}, {T[12]}")
        A(f"s_add_u32 {T[1]}, {T[1]}, {T[2]}")
        A(f"s_lshl_b32 {T[2]}, {T[12]}, 3")
        A(f"s_add_u32 {T[13]}, {T[13]}, {T[10]}")
        A(f"buffer_load_dwordx4 v[164:167], v2, {SC_}, {T[4]} offen")
        for i in range(4):
            A(f"buffer_load_dwordx4 {v(16+4*i,4)}, v2, {SX_}, {T[4+i]} offen")
        for i in range(16):
            if i == min(WD, 15):
                A("s_barrier")
                self.srd("WS", "ws", WS_SIZE)
                self.gu_srd()
                self.stamp_init()
            if i >= WD:
                A(f"s_waitcnt vmcnt({WD-1})")
            self.dma(10 + (i & 1), SA_, T[1], T[9], W0 + i * 1024)
            if i < 15:
                A(f"s_add_u32 {T[1]}, {T[1]}, {T[2]}")
        for r in range(160, 164):
            A(f"v_mov_b32 v{r}, 0x3f803f80")
        A(f"v_add_u32 v7, {T[9]}, v7")
        A("s_waitcnt vmcnt(16)")
        A(f"s_cmp_eq_u32 {T[14]}, 0")
        A("s_cbranch_scc1 B_pq")
        self.silu()
        A("s_branch B_pd")
        A.label("B_pq")
        self.ln(16, 160, 32, 152, 128)
        A.label("B_pd")
        A("s_waitcnt vmcnt(0)")
        self.lds_set_w(F_GO, 12, 13)
        self.stamp(1)
        if self.o["so"] == 2:
            A("s_branch L_fin")
        for c in range(4):
            if c:
                A(f"v_xor_b32 v4, {c<<5}, v7")
            for kk in range(4):
                for hf in range(2):
                    A(f"ds_read_b64_tr_b16 {v(64+16*c+4*kk+2*hf,2)}, v{4 if c else 7} offset:{W0+kk*4096+hf*512}")
            A("s_waitcnt lgkmcnt(0)")
        A(f"s_cmp_lg_u32 {T[14]}, 0")
        A("s_cbranch_scc1 B_mm")
        self.lds_wait(F_JF, 1, 4, 12)
        self.stamp(2)
        A(f"s_add_u32 {T[0]}, {T[8]}, {32*128}")
        self.poll([f"buffer_load_dwordx4 v[16:19], v3, {WS}, {T[8]} offen sc1",
                   f"buffer_load_dwordx4 v[20:23], v3, {WS}, {T[0]} offen sc1"], list(range(16, 24)), 5)
        self.stamp(3)
        self.prep_mod(16, 20, 136, 144)
        self.combine(128, 144, 136, 16)
        A.label("B_mm")
        accb = [32, 48, 128, 144]
        for c in range(4):
            for kk in range(4):
                A(f"v_mfma_f32_16x16x32_bf16 {v(accb[c]+4*kk,4)}, v[16:19], {v(64+16*c+4*kk,4)}, 0")
        A(f"v_add_u32 v4, {T[8]}, v9")
        for c in range(4):
            self.selreduce([accb[c] + 4 * k for k in range(4)], 24 + c)
            A(f"ds_write_b32 v4, v{24+c} offset:{RED1+256*c}")
        A(f"s_lshl_b32 {T[0]}, {sW}, 8")
        A(f"v_add_u32 v4, {T[0]}, v9")
        A(f"v_mov_b32 v5, {F_JF:#x}")
        self.poll([f"ds_read_b32 v{24+i}, v4 offset:{RED1+1024*i}" for i in range(4)] + ["ds_read_b32 v28, v5"],
                  list(range(24, 29)), 29, lds=True)
        A("v_add_f32 v24, v24, v25")
        A("v_add_f32 v26, v26, v27")
        A("v_add_f32 v24, v24, v26")
        self.pack_x4(24, 28)
        A("s_mov_b32 exec_lo, 0x01010101")
        A("s_mov_b32 exec_hi, 0x01010101")
        A(f"buffer_store_dwordx4 v[28:31], v8, {WS}, {T[13]} offen sc1")
        A("s_mov_b64 exec, -1")
        self.stamp(5)
        A("s_branch B_post")
        A.label("B_jan")
        A("v_lshlrev_b32 v4, 4, v1")
        for r in range(16, 20):
            A(f"v_mov_b32 v{r}, -1")
        A(f"s_lshl_b32 {T[0]}, {sJ}, 3")
        A(f"s_add_u32 {T[0]}, {T[0]}, {sW}")
        A(f"s_mul_i32 {T[0]}, {T[0]}, 3072")
        A(f"s_add_u32 {T[0]}, {T[0]}, {sG}")
        A(f"s_mul_i32 {T[1]}, {sX}, 3072")
        A(f"s_add_u32 {T[1]}, {T[1]}, {T[8]}")
        A(f"s_lshl_b32 {T[2]}, {sJ}, 2")
        A(f"s_add_u32 {T[2]}, {T[2]}, {sW}")
        A("s_waitcnt lgkmcnt(0)")
        self.srd("WS", "ws", WS_SIZE)
        if not self.o["nojan"]:
            A(f"s_cmp_ge_u32 {T[2]}, 3")
            A("s_cbranch_scc1 B_jan2")
            A(f"buffer_store_dwordx4 v[16:19], v4, {WS}, {T[1]} offen sc1")
            A.label("B_jan2")
            for i in range(3):
                A(f"buffer_store_dwordx4 v[16:19], v4, {WS}, {T[0]} offen offset:{1024*i} sc1")
        A("s_barrier")
        self.gu_srd()
        self.stamp_init()
        for r in range(160, 164):
            A(f"v_mov_b32 v{r}, 0x3f803f80")
        A("s_waitcnt vmcnt(0)")
        self.lds_set_w(F_J1, 12, 13)
        self.stamp(1)
        if self.o["so"] == 2:
            A("s_branch L_fin")
        A.label("B_post")
        A(f"s_cmp_lg_u32 {sW}, 3")
        A("s_cbranch_scc1 B_noq")
        self.qp_xt()
        A.label("B_noq")
        A(f"s_cmp_ge_u32 {sJ}, 14")
        A("s_cbranch_scc1 L_fin")
        self.lds_wait(F_JF, 1, 4, 12)
        A(f"s_add_u32 {T[0]}, {T[8]}, {96*128}")
        A(f"s_add_u32 {T[1]}, {T[8]}, {128*128}")
        self.poll([f"buffer_load_dwordx4 v[16:19], v3, {WS}, {T[0]} offen sc1",
                   f"buffer_load_dwordx4 v[20:23], v3, {WS}, {T[1]} offen sc1"], list(range(16, 24)), 5)
        self.prep_mod(16, 20, 136, 144)
        self.get_mode(4, 12)
        self.stamp(6)
        self.lane_addr(10, 4, [(4, 2, 3), (2, 2, 0)])
        A("v_mul_u32_u24 v10, 0xe00, v10")
        self.lane_addr(11, 4, [(0, 2, 4)])
        self.lane_addr(5, 4, [(4, 1, 5)])
        A("v_xor_b32 v11, v11, v5")
        A("v_add_u32 v10, v10, v11")
        self.lane_addr(7, 4, [(2, 4, 6), (4, 1, 5), (0, 2, 3)])
        A(f"v_add_u32 v7, {T[9]}, v7")
        A("v_xor_b32 v11, 32, v7")
        A(f"s_mul_i32 {T[1]}, {sW}, {128*3584}")
        A(f"s_mul_i32 {T[2]}, {sX}, 448")
        A(f"s_add_u32 {T[1]}, {T[1]}, {T[2]}")
        A(f"s_lshr_b32 {T[3]}, {sJ}, 1")
        A(f"s_lshl_b32 {T[2]}, {T[3]}, 6")
        A(f"s_add_u32 {T[12]}, {T[1]}, {T[2]}")
        A(f"s_lshl_b32 {T[13]}, {T[3]}, 8")
        A(f"s_and_b32 {T[14]}, {sJ}, 1")
        A(f"s_lshl_b32 {T[2]}, {T[14]}, 11")
        A(f"s_add_u32 {T[13]}, {T[13]}, {T[2]}")
        A(f"s_add_u32 {T[13]}, {T[13]}, {sG}")
        A(f"s_add_u32 {T[13]}, {T[13]}, {G_GL:#x}")
        for i in range(4):
            A(f"s_lshl_b32 {T[4+i]}, {T[4+i]}, 2")
            A(f"s_add_u32 {T[4+i]}, {T[4+i]}, {sG}")
            A(f"s_add_u32 {T[4+i]}, {T[4+i]}, {G_X1:#x}")
        A(f"s_lshl_b32 {T[10]}, {sW}, 9")
        A(f"v_add_u32 v9, {T[10]}, v6")
        self.mask(MA, 0x55555555)
        self.dry_begin("TB")
        self.lds_wait(F_VPUB, 4, 4, 12)
        self.stamp(7)
        for kk in range(4):
            for hf in range(2):
                A(f"s_add_u32 {T[1]}, {T[12]}, {(32*kk+4*hf)*3584:#x}")
                self.dma(10, SB_, T[1], T[9], W0 + (2 * kk + hf) * 1024)
        A("s_waitcnt vmcnt(0)")
        for c in range(2):
            for kk in range(4):
                for hf in range(2):
                    A(f"ds_read_b64_tr_b16 {v(64+16*c+4*kk+2*hf,2)}, v{11 if c else 7} offset:{W0+(2*kk+hf)*1024}")
            A("s_waitcnt lgkmcnt(0)")
        self.stamp(8)
        A.label("TB_body")
        self.poll([f"buffer_load_dwordx4 {v(16+4*i,4)}, v3, {WS}, {T[4+i]} offen sc1" for i in range(4)],
                  list(range(16, 32)), 5)
        self.stamp(9)
        self.ln(16, 160, 32, 152, 128)
        self.combine(128, 144, 136, 16)
        for c in range(2):
            for kk in range(4):
                A(f"v_mfma_f32_16x16x32_bf16 {v(32+16*c+4*kk,4)}, v[16:19], {v(64+16*c+4*kk,4)}, 0")
        self.selreduce([32, 36, 40, 44], 24)
        self.selreduce([48, 52, 56, 60], 25)
        A(f"s_cmp_eq_u32 {sW}, 0")
        A("s_cbranch_scc1 B_g0")
        A(f"ds_write_b64 v9, v[24:25] offset:{RED_GU}")
        A("s_branch TB_end")
        A.label("B_g0")
        self.stamp(10)
        self.poll([f"ds_read_b64 {v(24+2*i,2)}, v6 offset:{RED_GU+512*i}" for i in (1, 2, 3)], list(range(26, 32)), 5,
                  lds=True)
        A("v_pk_add_f32 v[24:25], v[24:25], v[26:27]")
        A("v_pk_add_f32 v[28:29], v[28:29], v[30:31]")
        A("v_pk_add_f32 v[24:25], v[24:25], v[28:29]")
        A(f"s_cmp_lg_u32 {T[14]}, 0")
        A("s_cbranch_scc1 B_up")
        k0 = 0.7978845608028654
        for r in (24, 25):
            self.rbf(r, r)
        for r in (24, 25):
            A(f"v_mul_f32 v{r+2}, v{r}, v{r}")
        for r in (24, 25):
            A(f"v_mul_f32 v{r+2}, {f32(-2*k0*0.044715*LOG2E)}, v{r+2}")
        for r in (24, 25):
            A(f"v_add_f32 v{r+2}, {f32(-2*k0*LOG2E)}, v{r+2}")
        for r in (24, 25):
            A(f"v_mul_f32 v{r+2}, v{r+2}, v{r}")
        for r in (24, 25):
            A(f"v_exp_f32 v{r+2}, v{r+2}")
        for r in (24, 25):
            A(f"v_add_f32 v{r+2}, 1.0, v{r+2}")
        for r in (24, 25):
            A(f"v_rcp_f32 v{r+2}, v{r+2}")
        for r in (24, 25):
            A(f"v_mul_f32 v{r}, v{r}, v{r+2}")
        A.label("B_up")
        A("v_mov_b32_dpp v26, v24 quad_perm:[1,0,3,2] row_mask:0xf bank_mask:0xf")
        A("v_mov_b32_dpp v27, v25 quad_perm:[1,0,3,2] row_mask:0xf bank_mask:0xf")
        A("v_cvt_pk_bf16_f32 v24, v24, v26")
        A("v_cvt_pk_bf16_f32 v25, v25, v27")
        A(f"s_and_b64 exec, {FULL}, {MA}")
        self.pub([f"buffer_store_dword v24, v8, {WS}, {T[13]} offen",
                  f"buffer_store_dword v25, v8, {WS}, {T[13]} offen offset:128"])
        self.stamp(11)
        self.dry_end("TB")

    def gu_srd(self):
        A = self.A
        l1, l2 = A.newlabel("GU"), A.newlabel("GU")
        A(f"s_bitcmp1_b32 {sJ}, 0")
        A(f"s_cbranch_scc1 {l1}")
        self.srd("SB_", "wg", 512 * 1792 * 2)
        A(f"s_branch {l2}")
        A.label(l1)
        self.srd("SB_", "wu", 512 * 1792 * 2)
        A.label(l2)
        A("s_nop 0")

    def chainA(self):
        A = self.A
        A.label("L_chainA")
        A(f"s_sub_u32 {T[10]}, {sJ}, 16")
        A("v_lshlrev_b32 v10, 13, v10")
        A("v_add_u32 v10, v10, v11")
        A("v_xor_b32 v11, 64, v10")
        A(f"s_lshl_b32 {T[1]}, {sX}, 9")
        A(f"s_lshr_b32 {T[12]}, {T[10]}, 3")
        A(f"s_lshl_b32 {T[2]}, {T[12]}, 2")
        A(f"s_add_u32 {T[1]}, {T[1]}, {T[2]}")
        A(f"s_add_u32 {T[1]}, {T[1]}, {sW}")
        A(f"s_lshl_b32 {T[1]}, {T[1]}, 10")
        A(f"s_and_b32 {T[13]}, {T[10]}, 7")
        A(f"s_lshl_b32 {T[2]}, {T[13]}, 7")
        A(f"s_add_u32 {T[1]}, {T[1]}, {T[2]}")
        A(f"s_lshl_b32 {T[2]}, {sW}, 13")
        A("s_waitcnt lgkmcnt(0)")
        A("s_barrier")
        self.srd("SA_", "wo", 4096 * 512 * 2)
        self.srd("SB_", "wd", 512 * 1792 * 2)
        self.srd("WS", "ws", WS_SIZE)
        self.srd("SX_", "x", 4096)
        self.srd("SOUT", "out", 4096)
        self.stamp_init()
        for ki in range(2):
            for g in range(4):
                A(f"s_add_u32 {T[3]}, {T[1]}, {(128*g+64*ki)*1024:#x}")
                self.dma(10 + (g & 1), SA_, T[3], T[2], W0 + ki * 4096 + g * 1024)
        self.lane_addr(10, 4, [(4, 2, 13), (2, 2, 10), (0, 2, 4)])
        self.lane_addr(5, 4, [(4, 1, 5)])
        A("v_xor_b32 v10, v10, v5")
        A(f"s_mul_i32 {T[1]}, {sX}, {224*1024}")
        A(f"s_lshl_b32 {T[3]}, {T[10]}, 6")
        A(f"s_add_u32 {T[1]}, {T[1]}, {T[3]}")
        A(f"s_lshr_b32 {T[3]}, {sW}, 1")
        A(f"s_lshl_b32 {T[3]}, {T[3]}, 15")
        A(f"s_add_u32 {T[1]}, {T[1]}, {T[3]}")
        A(f"s_and_b32 {T[0]}, {sW}, 1")
        A(f"s_lshl_b32 {T[3]}, {T[0]}, 12")
        A(f"s_add_u32 {T[1]}, {T[1]}, {T[3]}")
        A(f"s_lshl_b32 {T[2]}, {sW}, 10")
        A("s_waitcnt vmcnt(4)")
        for i in range(4):
            if i == 3:
                A(f"s_cmp_ge_u32 {sW}, 2")
                A("s_cbranch_scc1 A_dn3")
            self.dma(10, SB_, T[1], T[2], WDN + i * 4096)
            if i < 3:
                A(f"s_add_u32 {T[1]}, {T[1]}, {64*1024}")
        A.label("A_dn3")
        A(f"s_lshl_b32 {T[4]}, {T[10]}, 1")
        A(f"s_add_u32 {T[4]}, {T[4]}, {T[0]}")
        A(f"s_lshl_b32 {T[5]}, {T[4]}, 7")
        A(f"s_lshl_b32 {T[6]}, {T[4]}, 8")
        A(f"s_lshl_b32 {T[7]}, {T[4]}, 5")
        for i in range(4):
            A(f"s_add_u32 {T[16+i]}, {T[6]}, {WS_G+G_AP+(i&1)*0x40000+(i>>1)*0x2000:#x}")
        for i in range(2):
            A(f"s_add_u32 {T[20+i]}, {T[6]}, {WS_G+G_OPT+i*0x40000:#x}")
        A(f"s_add_u32 {T[22]}, {sG}, {T[5]}")
        A(f"s_add_u32 {T[22]}, {T[22]}, {G_X1:#x}")
        A(f"s_add_u32 {T[23]}, {sG}, {T[6]}")
        A(f"s_add_u32 {T[23]}, {T[23]}, {G_OPT:#x}")
        A(f"s_lshl_b32 {T[24]}, {T[13]}, 2")
        A(f"s_add_u32 {T[24]}, {T[24]}, {sW}")
        A(f"s_lshl_b32 {T[24]}, {T[24]}, 8")
        A(f"s_lshl_b32 {T[3]}, {T[12]}, 13")
        A(f"s_add_u32 {T[24]}, {T[24]}, {T[3]}")
        A(f"s_add_u32 {T[24]}, {T[24]}, {sG}")
        A(f"s_add_u32 {T[24]}, {T[24]}, {G_AP:#x}")
        A(f"s_lshl_b32 {T[25]}, {T[12]}, 9")
        A(f"s_add_u32 {T[25]}, {T[25]}, {sG}")
        A(f"s_add_u32 {T[25]}, {T[25]}, {G_O:#x}")
        A(f"s_add_u32 {T[26]}, {sG}, {G_GL:#x}")
        self.lane_addr(131, 4, [(2, 2, 10), (0, 2, 3), (4, 2, 1)])
        self.lane_addr(132, 4, [(0, 4, 3), (4, 2, 1)])
        self.lane_addr(11, 4, [(4, 2, 16), (0, 4, 4)])
        self.lane_addr(133, 4, [(4, 2, 4), (0, 3, 1)])
        A("v_bfe_u32 v4, v1, 2, 2")
        A("v_min_u32 v4, 2, v4")
        self.lane_addr(134, 5, [(5, 1, 7), (0, 2, 5), (4, 1, 4)])
        A("v_lshl_add_u32 v134, v4, 8, v134")
        A("s_waitcnt vmcnt(0)")
        self.lds_set_w(F_WD, 4, 5)
        self.stamp(1)
        if self.o["so"] == 2:
            A("s_branch L_fin")
        self.lds_wait(F_WD, 4, 4, 12)
        A(f"s_lshl_b32 {T[1]}, {sW}, 5")
        A(f"v_xor_b32 v7, {T[1]}, v7")
        for o in range(8):
            for hf in range(2):
                A(f"ds_read_b64_tr_b16 {v(64+4*o+2*hf,2)}, v7 offset:{W0+o*4096+hf*512}")
            if o == 3:
                A("s_waitcnt lgkmcnt(0)")
        A("s_waitcnt lgkmcnt(0)")
        self.lane_addr(7, 4, [(2, 4, 6), (4, 1, 5), (0, 2, 3)])
        A(f"s_lshl_b32 {T[1]}, {T[0]}, 5")
        A(f"v_xor_b32 v7, {T[1]}, v7")
        for kb in range(7):
            for hf in range(2):
                A(f"ds_read_b64_tr_b16 {v(96+4*kb+2*hf,2)}, v7 offset:{WDN+(2*kb+hf)*1024}")
        A("s_waitcnt lgkmcnt(0)")
        self.stamp(2)
        A(f"s_cmp_lg_u32 {sW}, 3")
        A("s_cbranch_scc1 A_noq")
        self.qp_xt()
        A.label("A_noq")
        A(f"s_cmp_ge_u32 {sW}, 2")
        A("s_cbranch_scc1 A_now")
        self.lds_wait(F_JF, 1, 4, 12)
        A(f"buffer_load_ushort v128, v131, {SX_}, {T[7]} offen")
        A(f"s_add_u32 {T[0]}, {T[5]}, {64*128}")
        A(f"s_add_u32 {T[1]}, {T[5]}, {160*128}")
        self.poll([f"buffer_load_ushort v129, v132, {WS}, {T[0]} offen sc1",
                   f"buffer_load_ushort v130, v132, {WS}, {T[1]} offen sc1"], [129, 130], 5, sent="0xffff")
        for r in (128, 129, 130):
            A(f"v_lshlrev_b32 v{r}, 16, v{r}")
        A.label("A_now")
        self.get_mode(4, 12)
        self.lane_addr(10, 4, [(3, 3, 11), (0, 3, 4)])
        A(f"s_lshl_b32 {T[0]}, {sX}, 2")
        A(f"s_add_u32 {T[0]}, {T[0]}, {sB}")
        A(f"s_lshl_b32 {T[0]}, {T[0]}, 16")
        A(f"s_sub_u32 {T[9]}, {sS}, 4")
        A(f"s_lshl_b32 {T[1]}, {T[9]}, 9")
        A(f"s_add_u32 {T[0]}, {T[0]}, {T[1]}")
        A(f"s_lshl_b32 {T[1]}, {sW}, 7")
        A(f"s_add_u32 {T[0]}, {T[0]}, {T[1]}")
        A(f"s_add_u32 {T[0]}, {T[0]}, {WS_OP:#x}")
        A(f"s_add_u32 {T[1]}, {T[0]}, 0x4000")
        A(f"s_add_u32 {T[2]}, {T[0]}, 0x8000")
        A(f"s_add_u32 {T[3]}, {T[0]}, 0xc000")
        A(f"s_lshl_b32 {T[8]}, {sB}, 10")
        A(f"s_lshl_b32 {T[9]}, {T[9]}, 8")
        A(f"s_add_u32 {T[8]}, {T[8]}, {T[9]}")
        A(f"s_lshl_b32 {T[9]}, {sW}, 6")
        A(f"s_add_u32 {T[8]}, {T[8]}, {T[9]}")
        A(f"s_add_u32 {T[8]}, {T[8]}, {sG}")
        A(f"s_add_u32 {T[8]}, {T[8]}, {G_O:#x}")
        self.mask(MA, 0x00550055)
        self.mask(MB_, 0x11111111)
        self.mask(MC, 0x0000ffff)
        self.stamp(5)
        self.dry_begin("TA")
        self.lds_wait(F_VPUB, 4, 4, 12)
        self.stamp(6)
        A.label("TA_body")
        self.poll([f"buffer_load_dwordx4 {v(16+4*i,4)}, v10, {WS}, {T[i]} offen sc1" for i in range(4)],
                  list(range(16, 32)), 5)
        self.stamp(7)
        self.sum4(4)
        self.treduce(16, 20)
        A("v_add_f32_dpp v20, v20, v20 row_ror:8 row_mask:0xf bank_mask:0xf")
        self.pack_dw(20, 20, 21)
        A(f"s_and_b64 exec, {FULL}, {MA}")
        self.pub([f"buffer_store_dword v20, v133, {WS}, {T[8]} offen"])
        A(f"s_mov_b64 exec, {FULL}")
        self.poll([f"buffer_load_dwordx4 {v(16+4*t,4)}, v2, {WS}, {T[25]} offen offset:{256*t} sc1" for t in range(2)],
                  list(range(16, 24)), 5)
        self.stamp(8)
        for t in range(2):
            for kk in range(4):
                A(f"v_mfma_f32_16x16x32_bf16 {v(32+4*kk,4)}, {v(16+4*t,4)}, {v(64+16*t+4*kk,4)}, " +
                  ("0" if t == 0 else v(32 + 4 * kk, 4)))
        self.selreduce([32, 36, 40, 44], 48)
        self.quad_x4(48)
        A(f"s_and_b64 exec, {FULL}, {MB_}")
        A(f"buffer_store_dwordx4 v[48:51], v9, {WS}, {T[24]} offen sc1")
        A(f"s_mov_b64 exec, {FULL}")
        self.stamp(9)
        A(f"s_cmp_ge_u32 {sW}, 2")
        A("s_cbranch_scc1 A_down")
        self.xsum(T[16:20], 24)
        self.stamp(10)
        self.rbf(24, 24)
        A("v_mul_f32 v24, v24, v129")
        self.rbf(24, 24)
        A("v_add_f32 v24, v24, v128")
        A("v_mov_b32 v25, v24")
        self.rbf(135, 24)
        A("v_permlane16_swap_b32 v24, v25")
        A("v_cvt_pk_bf16_f32 v24, v24, v25")
        A(f"s_and_b64 exec, {FULL}, {MC}")
        self.pub([f"buffer_store_dword v24, v132, {WS}, {T[22]} offen"])
        A(f"s_mov_b64 exec, {FULL}")
        A(f"s_cmp_lg_u32 {T[13]}, {sX}")
        A("s_cbranch_scc1 TA_end")
        self.xsum(T[20:22], 24)
        self.stamp(11)
        self.rbf(24, 24)
        A("v_mul_f32 v24, v24, v130")
        self.rbf(24, 24)
        A("v_add_f32 v24, v24, v135")
        self.rbf(24, 24)
        A(f"buffer_store_short_d16_hi v24, v131, {SOUT}, {T[7]} offen")
        A("s_branch TA_end")
        A.label("A_down")
        self.poll([f"buffer_load_dwordx4 v[16:19], v3, {WS}, {T[26]} offen sc1",
                   f"buffer_load_dwordx4 v[20:23], v134, {WS}, {T[26]} offen offset:1024 sc1",
                   f"buffer_load_dwordx4 v[24:27], v3, {WS}, {T[26]} offen offset:2048 sc1",
                   f"buffer_load_dwordx4 v[28:31], v134, {WS}, {T[26]} offen offset:3072 sc1"], list(range(16, 32)), 5)
        self.stamp(10)
        for t in range(2):
            self.unpack(16 + 4 * t, 136)
            self.unpack(24 + 4 * t, 144)
            for p in range(4):
                A(f"v_pk_mul_f32 {v(136+2*p,2)}, {v(136+2*p,2)}, {v(144+2*p,2)}")
            for p in range(4):
                A(f"v_cvt_pk_bf16_f32 v{16+4*t+p}, v{136+2*p}, v{137+2*p}")
            for kk in range(4 if t == 0 else 3):
                A(f"v_mfma_f32_16x16x32_bf16 {v(32+4*kk,4)}, {v(16+4*t,4)}, {v(96+16*t+4*kk,4)}, " +
                  ("0" if t == 0 else v(32 + 4 * kk, 4)))
        self.selreduce([32, 36, 40, 44], 48)
        self.quad_x4(48)
        A(f"s_and_b64 exec, {FULL}, {MB_}")
        A(f"buffer_store_dwordx4 v[48:51], v9, {WS}, {T[23]} offen sc1")
        self.stamp(11)
        self.dry_end("TA")

    def kv_base(self):
        A = self.A
        A(f"s_lshl_b32 {T[0]}, {sB}, 3")
        A(f"s_add_u32 {T[0]}, {T[0]}, {sX}")
        A(f"s_lshl_b32 {T[0]}, {T[0]}, 22")
        A(f"s_lshl_b32 {T[1]}, {sS}, 17")
        A(f"s_add_u32 {T[0]}, {T[0]}, {T[1]}")
        A(f"s_add_u32 {T[0]}, {T[0]}, 0x300000")
        A(f"s_mul_i32 {T[1]}, {sX}, {self.o['rx']}")
        A(f"s_mul_i32 {T[2]}, {sB}, {self.o['rb']}")
        A(f"s_add_u32 {T[1]}, {T[1]}, {T[2]}")
        A(f"s_mul_i32 {T[2]}, {sS}, {self.o['rs']}")
        A(f"s_add_u32 {T[1]}, {T[1]}, {T[2]}")
        A(f"s_mul_i32 {T[2]}, {sW}, {8 if self.o['blocked'] else 1}")
        A(f"s_add_u32 {T[1]}, {T[1]}, {T[2]}")

    def tile_off(self, tau):
        A = self.A
        A(f"s_add_u32 {T[2]}, {T[1]}, {tau if self.o['blocked'] else 4*tau}")
        A(f"s_and_b32 {T[2]}, {T[2]}, 31")
        A(f"s_lshl_b32 {T[2]}, {T[2]}, 12")
        A(f"s_add_u32 {T[2]}, {T[2]}, {T[0]}")

    def kwave(self):
        A = self.A
        D = self.o["depth"]
        KB = 40
        A.label("L_k")
        self.lane_addr(2, 4, [(1, 1, 10), (2, 2, 8), (0, 1, 6), (4, 2, 4)])
        self.kv_base()
        A("s_waitcnt lgkmcnt(0)")
        self.srd("SA_", "k", 0x8000000)
        self.srd("WS", "ws", WS_SIZE)
        self.stamp_init()
        A("s_barrier")
        hold = 4 if self.o["hold_m"] else (2 if self.o["hold_j"] else 0)
        if hold and self.o["so"] != 1:
            A(f"s_cmp_ge_u32 {sJ}, {hold}")
            A("s_cbranch_scc1 K_go")
            self.lds_wait(F_GO, 4, 3, 8)
            A.label("K_go")
        for i in range(32):
            tau, u = i >> 2, i & 3
            if u == 0:
                self.tile_off(tau)
            if i >= D:
                A(f"s_waitcnt vmcnt({D-1})")
            A(f"buffer_load_dwordx4 {v(KB+4*i,4)}, v2, {SA_}, {T[2]} offen offset:{2048*(u>>1)+128*(u&1)} nt")
            if i == 16:
                A(f"v_mov_b32 v3, {F_KHALF:#x}")
                A("ds_write_b32 v3, v3")
        self.lds_set_w(F_KDONE, 3, 4)
        self.stamp(1)
        if self.o["so"]:
            A("s_waitcnt vmcnt(0)")
            A("s_branch L_fin")
            return
        self.lane_addr(3, 4, [(0, 2, 8), (2, 1, 6), (4, 2, 4)])
        self.poll([f"ds_read_b128 {v(8+4*u,4)}, v3 offset:{QL+128*u}" for u in range(2)], list(range(8, 16)), 4, lds=True)
        self.stamp(2)
        dbuf = [16, 20, 32, 36]
        pend = []
        for dl in range(16):
            jj, c = dl >> 2, dl & 3
            if dl % 2 == 0:
                A(f"s_waitcnt vmcnt({28-2*dl})")
            d = dbuf[dl & 3]
            for uu in range(2):
                A(f"v_mfma_f32_16x16x32_bf16 {v(d,4)}, {v(KB+8*dl+4*uu,4)}, {v(8+4*uu,4)}, " + ("0" if uu == 0 else v(d, 4)))
            cur = []
            for rho in range(2):
                own, oth = (d + 2 * rho, d + 2 * rho + 1) if c % 2 == 0 else (d + 2 * rho + 1, d + 2 * rho)
                ror = 12 if c % 2 == 0 else 4
                cur.append(f"v_add_f32_dpp v{24+2*jj+rho}, v{oth}, v{own} row_ror:{ror} row_mask:0xf bank_mask:{1<<c:#x}")
            pend.append(cur)
            if len(pend) > 2:
                for l in pend.pop(0):
                    A(l)
        for cur in pend:
            for l in cur:
                A(l)
        self.stamp(3)
        for e in range(8):
            self.rbf(24 + e, 24 + e)
        for e in range(8):
            A(f"v_mul_f32 v{24+e}, {f32(0.08838834764831845)}, v{24+e}")
        for e in range(8):
            self.rbf(24 + e, 24 + e)
        A("v_max3_f32 v32, v24, v25, v26")
        A("v_max3_f32 v33, v27, v28, v29")
        A("v_max3_f32 v32, v32, v30, v31")
        A("v_max_f32 v32, v32, v33")
        self.allred("v_max_f32", 32, 34)
        for e in range(8):
            A(f"v_sub_f32 v{24+e}, v{24+e}, v32")
        for e in range(8):
            A(f"v_mul_f32 v{24+e}, {f32(LOG2E)}, v{24+e}")
        for e in range(8):
            A(f"v_exp_f32 v{24+e}, v{24+e}")
        A("v_add_f32 v33, v24, v25")
        A("v_add_f32 v34, v26, v27")
        A("v_add_f32 v35, v28, v29")
        A("v_add_f32 v36, v30, v31")
        A("v_add_f32 v33, v33, v34")
        A("v_add_f32 v35, v35, v36")
        A("v_add_f32 v33, v33, v35")
        self.allred("v_add_f32", 33, 34)
        self.lds_wait(F_CLR, 4, 3, 8)
        A(f"s_lshl_b32 {T[3]}, {sB}, 10")
        A(f"s_add_u32 {T[3]}, {T[3]}, {sG}")
        A(f"s_add_u32 {T[3]}, {T[3]}, {G_ML:#x}")
        A(f"s_lshl_b32 {T[4]}, {sS}, 7")
        A(f"s_add_u32 {T[4]}, {T[4]}, {T[3]}")
        A(f"s_lshl_b32 {T[5]}, {sW}, 3")
        A(f"s_add_u32 {T[4]}, {T[4]}, {T[5]}")
        A("v_lshlrev_b32 v3, 5, v1")
        A("s_mov_b64 exec, 15")
        A(f"buffer_store_dwordx2 v[32:33], v3, {WS}, {T[4]} offen sc1")
        A("s_mov_b64 exec, -1")
        self.stamp(4)
        self.lane_addr(3, 4, [(3, 3, 7), (0, 2, 5), (2, 1, 4)])
        self.poll([f"buffer_load_dwordx4 v[8:11], v3, {WS}, {T[3]} offen sc1"], [8, 9, 10, 11], 4)
        self.stamp(5)
        A("v_max_f32 v12, v8, v10")
        self.allred("v_max_f32", 12, 13)
        A("v_sub_f32 v8, v8, v12")
        A("v_sub_f32 v10, v10, v12")
        A("v_sub_f32 v32, v32, v12")
        A(f"v_mul_f32 v8, {f32(LOG2E)}, v8")
        A(f"v_mul_f32 v10, {f32(LOG2E)}, v10")
        A(f"v_mul_f32 v32, {f32(LOG2E)}, v32")
        A("v_exp_f32 v8, v8")
        A("v_exp_f32 v10, v10")
        A("v_exp_f32 v32, v32")
        A("v_mul_f32 v9, v9, v8")
        A("v_fmac_f32 v9, v11, v10")
        self.allred("v_add_f32", 9, 13)
        A("v_rcp_f32 v9, v9")
        A("v_mul_f32 v32, v32, v9")
        for e in range(8):
            A(f"v_mul_f32 v{24+e}, v{24+e}, v32")
        for p in range(4):
            A(f"v_cvt_pk_bf16_f32 v{24+p}, v{24+2*p}, v{25+2*p}")
        for p in range(4):
            A(f"v_min_u32 v{24+p}, 0xfffffffe, v{24+p}")
        self.lane_addr(3, 4, [(4, 2, 6), (0, 2, 4), (2, 2, 2)])
        A(f"s_lshl_b32 {T[3]}, {sW}, 10")
        A(f"v_add_u32 v3, {T[3]}, v3")
        for jj in range(4):
            A(f"ds_write_b32 v3, v{24+jj} offset:{PL+256*jj}")
        self.stamp(6)
        A("s_branch L_fin")

    def pv(self, buf, P, first, TB=56, ACC=24):
        A = self.A
        for j in range(4):
            t = TB + 8 * (j & 1)
            for p in range(4):
                A(f"v_perm_b32 v{t+p}, v{buf+4*(2*p+1)+j}, v{buf+4*(2*p)+j}, {T[8]}")
            for p in range(4):
                A(f"v_perm_b32 v{t+4+p}, v{buf+4*(2*p+1)+j}, v{buf+4*(2*p)+j}, {T[9]}")
            for hh in range(2):
                a = ACC + 4 * (2 * j + hh)
                A(f"v_mfma_f32_16x16x32_bf16 {v(a,4)}, {v(P,4)}, {v(t+4*hh,4)}, " + ("0" if first else v(a, 4)))

    def vwave(self):
        A = self.A
        D = self.o["vdepth"] or self.o["depth"]
        VB = 72
        A.label("L_v")
        A("v_lshlrev_b32 v2, 4, v1")
        for r in range(4, 8):
            A(f"v_mov_b32 v{r}, -1")
        A(f"s_mul_i32 {T[3]}, {sW}, 3072")
        A(f"v_add_u32 v3, {T[3]}, v2")
        for i in range(3):
            A(f"ds_write_b128 v3, v[4:7] offset:{SM+1024*i}")
        A(f"s_mul_i32 {T[5]}, {sJ}, {8*3072}")
        A(f"s_add_u32 {T[3]}, {T[3]}, {T[5]}")
        A(f"s_add_u32 {T[3]}, {T[3]}, {sG}")
        A(f"s_add_u32 {T[3]}, {T[3]}, {4*3072}")
        A("s_waitcnt lgkmcnt(0)")
        self.srd("WS", "ws", WS_SIZE)
        A(f"s_cmp_ge_u32 {sJ}, {0 if self.o['nojan'] else 2}")
        A("s_cbranch_scc1 V_noj")
        for i in range(3):
            A(f"buffer_store_dwordx4 v[4:7], v2, {WS}, {T[3]} offen offset:{1024*i} sc1")
        A.label("V_noj")
        A("s_barrier")
        self.srd("DBG", "dbg", 256)
        self.srd("SA_", "v", 0x8000000)
        self.stamp_init()
        A(f"s_cmp_ge_u32 {sJ}, {0 if self.o['so'] == 1 else 2}")
        A("s_cbranch_scc1 V_noj2")
        A("s_waitcnt vmcnt(0)")
        self.lds_set_w(F_J2, 3, 8)
        A(f"s_cmp_lg_u32 {sW}, 0")
        A("s_cbranch_scc1 V_noj2")
        A(f"v_mov_b32 v3, {F_J1:#x}")
        self.poll(["ds_read_b128 v[8:11], v3", "ds_read_b128 v[12:15], v3 offset:16"], list(range(8, 16)), 16, lds=True)
        self.stamp(8)
        A(f"s_lshl_b32 {T[3]}, {sX}, 1")
        A(f"s_add_u32 {T[3]}, {T[3]}, {sJ}")
        A(f"s_lshl_b32 {T[3]}, {T[3]}, 2")
        A("v_mov_b32 v3, 0")
        A("s_mov_b64 exec, 1")
        A(f"buffer_store_dword v8, v3, {DBG}, {T[3]} offen sc1")
        A("s_mov_b64 exec, -1")
        A(f"v_mov_b32 v3, {F_GO:#x}")
        A("ds_write_b128 v3, v[8:11]")
        A.label("V_noj2")
        A(f"s_lshl_b32 {T[4]}, {sW}, 10")
        A(f"s_cmp_lg_u32 {sW}, 0")
        A("s_cbranch_scc1 V_nodbg")
        A(f"s_cmp_lt_u32 {sJ}, {self.o['early']}")
        A("s_cbranch_scc1 V_early")
        self.lds_wait(F_KHALF, 1, 3, 8)
        A.label("V_early")
        L, Dn = A.newlabel("P"), A.newlabel("PD")
        A(f"s_mov_b32 {sCNT}, {LIM_G}")
        A("s_mov_b64 exec, 15")
        if self.o["nojan"] or self.o["so"] == 1:
            A(f"s_branch {Dn}")
        A.label(L)
        A(f"buffer_load_dwordx4 v[8:11], v2, {DBG}, 0 offen sc1")
        A("s_waitcnt vmcnt(0)")
        A("v_min3_u32 v8, v8, v9, v10")
        A("v_min_u32 v8, v8, v11")
        A("v_cmp_eq_u32 vcc, 0, v8")
        A(f"s_cbranch_vccz {Dn}")
        A(f"s_sub_u32 {sCNT}, {sCNT}, 1")
        A(f"s_cbranch_scc0 {L}")
        A.label(Dn)
        A("s_mov_b64 exec, 1")
        A(f"v_mov_b32 v3, {F_JF:#x}")
        A("ds_write_b32 v3, v3")
        self.stamp(9)
        A(f"s_getreg_b32 {T[5]}, hwreg(HW_REG_XCC_ID)")
        A(f"s_and_b32 {T[5]}, {T[5]}, 0xf")
        A(f"s_lshl_b32 {T[3]}, {sJ}, 7")
        A(f"s_add_u32 {T[3]}, {T[3]}, {sG}")
        A(f"s_add_u32 {T[3]}, {T[3]}, {G_XT:#x}")
        A(f"v_mov_b32 v8, {T[5]}")
        A(f"buffer_store_dword v8, v2, {WS}, {T[3]} offen sc1")
        A("s_mov_b64 exec, -1")
        A.label("V_nodbg")
        A(f"s_lshl_b32 {T[7]}, {sX}, 2")
        A(f"s_add_u32 {T[7]}, {T[7]}, {sB}")
        A(f"s_lshl_b32 {T[7]}, {T[7]}, 3")
        A(f"s_add_u32 {T[7]}, {T[7]}, {sS}")
        A(f"s_lshl_b32 {T[7]}, {T[7]}, 2")
        A(f"s_add_u32 {T[7]}, {T[7]}, {sW}")
        A(f"s_lshl_b32 {T[7]}, {T[7]}, 11")
        A(f"s_add_u32 {T[7]}, {T[7]}, {WS_OP:#x}")
        self.lds_wait(F_KHALF, 1, 3, 8)
        if not self.o["noop"]:
            A(f"buffer_store_dwordx4 v[4:7], v2, {WS}, {T[7]} offen sc1")
            A(f"buffer_store_dwordx4 v[4:7], v2, {WS}, {T[7]} offen offset:1024 sc1")
        A("s_waitcnt vmcnt(0)")
        self.lds_set_w(F_CLR, 3, 8)
        self.stamp(1)
        self.kv_base()
        A(f"s_mov_b32 {T[8]}, 0x05040100")
        A(f"s_mov_b32 {T[9]}, 0x07060302")
        A(f"s_lshl_b32 {T[10]}, {sW}, 13")
        A(f"s_add_u32 {T[10]}, {T[10]}, {VL:#x}")
        self.lds_wait_w(F_KDONE, 3, 8)
        self.stamp(2)
        for i in range(32):
            if i & 3 == 0:
                self.tile_off(i >> 2)
                if i < 8:
                    A(f"s_add_u32 m0, {T[10]}, {1024*i}")
            if i >= D:
                A(f"s_waitcnt vmcnt({D-1})")
            if i < 8:
                A(f"buffer_load_dwordx4 v2, {SA_}, {T[2]} offen offset:{1024*(i&3)} nt lds")
            else:
                A(f"buffer_load_dwordx4 {v(VB+4*(i-8),4)}, v2, {SA_}, {T[2]} offen offset:{1024*(i&3)} nt")
        self.stamp(3)
        if self.o["so"]:
            A("s_waitcnt vmcnt(0)")
            A("s_branch L_fin")
            return
        self.get_mode(3, 4)
        self.lane_addr(3, 4, [(4, 2, 6), (0, 2, 4)])
        A(f"v_add_u32 v3, {T[4]}, v3")
        self.poll([f"ds_read_b128 {v(8+4*b,4)}, v3 offset:{PL+256*b}" for b in range(4)], list(range(8, 24)), 4, lds=True)
        self.stamp(4)
        A(f"v_add_u32 v3, {T[10]}, v2")
        A("s_waitcnt vmcnt(16)")
        self.pv(VB, 12, True)
        for i in range(8):
            A(f"ds_read_b128 {v(VB+4*i,4)}, v3 offset:{1024*i}")
        A("s_waitcnt vmcnt(8)")
        self.pv(VB + 32, 16, False)
        A("s_waitcnt lgkmcnt(0)")
        self.pv(VB, 8, False)
        self.stamp(5)
        A(f"s_lshl_b32 {T[11]}, {sW}, 2")
        A(f"s_add_u32 {T[11]}, {T[11]}, {F_VPUB:#x}")
        A(f"v_mov_b32 v3, {T[11]}")
        A("s_waitcnt vmcnt(0)")
        self.stamp(6)
        self.pv(VB + 64, 20, False)
        A("s_mov_b64 exec, 0xffff")
        self.pub([f"buffer_store_dwordx4 {v(24+4*e,4)}, v2, {WS}, {T[7]} offen offset:{256*e}" for e in range(8)])
        A("ds_write_b32 v3, v3")
        self.stamp(7)
        A("s_branch L_fin")

    def build(self):
        A = self.A
        if self.o["stamps"]:
            A("s_memrealtime s[100:101]")
        A("s_cmp_ge_u32 s2, 256")
        A("s_cbranch_scc1 L_end")
        A("s_load_dwordx16 s[4:19], s[0:1], 0")
        A("s_load_dwordx8 s[20:27], s[0:1], 64")
        A("s_load_dwordx4 s[28:31], s[0:1], 96")
        A("v_and_b32 v1, 63, v0")
        A("v_lshrrev_b32 v2, 6, v0")
        A("v_readfirstlane_b32 s3, v2")
        A(f"s_and_b32 {sX}, s2, 7")
        A(f"s_lshr_b32 {sJ}, s2, 3")
        A(f"s_and_b32 {sB}, {sJ}, 3")
        A(f"s_lshr_b32 {sS}, {sJ}, 2")
        A(f"s_add_u32 {sG}, {sX}, 1")
        A(f"s_lshl_b32 {sG}, {sG}, 16")
        A(f"s_mov_b64 {FULL}, -1")
        A(f"s_mov_b32 {sMODE}, 0")
        A(f"s_and_b32 {sW}, s3, 3")
        A("s_cmp_ge_u32 s3, 8")
        A("s_cbranch_scc1 L_v")
        A("s_cmp_ge_u32 s3, 4")
        A("s_cbranch_scc1 L_k")
        self.chain()
        self.kwave()
        self.vwave()
        for Ls, stores, Lb in self.deferred:
            A.label(Ls)
            for s in stores:
                A(s)
            A(f"s_branch {Lb}")
        A.label("L_fin")
        self.stamp_flush()
        A.label("L_end")
        A("s_endpgm")
        body = A.finish()
        ref = open(f"cdna_kernels/{KNAME}.s.ref").read().split("\n")
        head = []
        for l in ref:
            if l.startswith("; @launch"):
                head.append(f"; @launch grid=(256,1,1) block=(768,1,1) lds={LDS_SIZE}")
            elif l.startswith(";"):
                head.append(l)
            else:
                break
        out = head + ['.amdgcn_target "amdgcn-amd-amdhsa--gfx950"', ".text", f".globl {KNAME}_kernel", ".p2align 8",
                      f".type {KNAME}_kernel,@function", f"{KNAME}_kernel:"] + body
        out += ['.section .rodata,"a"', ".p2align 6", f".amdhsa_kernel {KNAME}_kernel",
                "  .amdhsa_next_free_vgpr 168", "  .amdhsa_next_free_sgpr 102", "  .amdhsa_accum_offset 168",
                "  .amdhsa_group_segment_fixed_size 0", "  .amdhsa_kernarg_size 112", "  .amdhsa_user_sgpr_count 2",
                "  .amdhsa_user_sgpr_kernarg_segment_ptr 1", "  .amdhsa_system_sgpr_workgroup_id_x 1",
                ".end_amdhsa_kernel"]
        return "\n".join(out) + "\n"


def gen(**o):
    return Gen(**o).build()


if __name__ == "__main__":
    o = {}
    out = f"cdna_kernels/{KNAME}.s"
    for a in sys.argv[1:]:
        k, val = a.split("=")
        if k == "out":
            out = val
        else:
            o[k] = int(val) if val.lstrip("-").isdigit() else val
    open(out, "w").write(gen(**o))
    print("wrote", out)
```

```python
import sys, struct
from asmlib import Asm

KNAME = "adaLN_cond__sliding_block_cached__geglu_ffn__decode"

WS_MOD = 0x0
WS_G = 0x10000
G_Q, G_ML, G_O, G_X1, G_GL, G_U, G_XT, G_AP, G_OPT = 0x0, 0x1000, 0x2000, 0x3000, 0x4000, 0x4800, 0x1400, 0x6000, 0xA000
G_QL = 0x5000
G_SIZE = 0xC000
WS_OP = 0x100000
WS_ST = 0x400000
WS_SIZE = 0x800000
SM, W0, VL = 0x0, 0x5000, 0x15000
RED1, RED_GU, QL, PL, FL, RL = SM, SM + 0x1000, SM + 0x1800, SM + 0x1C00, SM + 0x2C00, SM + 0x3000
F_KDONE, F_CLR, F_J1, F_J2, F_WD, F_GO, F_JF, F_MODE, F_KHALF, MLL, MLG = [FL + o for o in (
    0, 0x10, 0x20, 0x30, 0x50, 0x60, 0x70, 0x74, 0x78, 0x80, 0x100)]
WDN = W0 + 0x8000
LDS_SIZE = 0x1D000

WS, SC_, SA_, SB_, SX_, SOUT = [f"s[{r}:{r+3}]" for r in range(32, 56, 4)]
DBG = SC_
SRDN = dict(WS=32, SC_=36, DBG=36, SA_=40, SB_=44, SX_=48, SOUT=52)
KARG = dict(x=4, k=6, v=8, wq=10, wo=12, wg=16, wu=18, wd=20, c=22, wmod=24, out=26, dbg=28, ws=30)
sX, sJ, sB, sS, sW, sG, sCNT, sMODE = [f"s{r}" for r in range(72, 80)]
T = [f"s{r}" for r in range(80, 92)] + [f"s{r}" for r in range(56, 72)]
FULL = "s[92:93]"
MA, MB_, MC = "s[94:95]", "s[96:97]", "s[98:99]"
LIM_G = 40000
LIM_L = 400000


def f32(x):
    return "0x%08x" % struct.unpack("<I", struct.pack("<f", x))[0]


LOG2E = 1.4426950408889634


def v(n, c=1):
    return f"v{n}" if c == 1 else f"v[{n}:{n+c-1}]"


class Gen:
    def __init__(self, **o):
        self.o = dict(depth=6, kpre=2, rotmul=9, stamps=0, force_slow=0, wpol="nt", dry=0, noop=0, nog=0, nojan=0,
                      so=0, dm=3, rx=9, rb=8, rs=5, blocked=0, wdepth=6, early=4, vdepth=0, jfgo=16, mdepth=16, qlim=200)
        self.o.update(o)
        self.A = Asm()
        self.deferred = []
        self.nstamp = 0

    def srd(self, name, karg, size):
        A = self.A
        r = SRDN[name]
        k = KARG[karg]
        A(f"s_mov_b32 s{r}, s{k}")
        A(f"s_mov_b32 s{r+1}, s{k+1}")
        A(f"s_mov_b32 s{r+2}, {size:#x}")
        A(f"s_mov_b32 s{r+3}, 0x20000")

    def lane_addr(self, dst, tmp, terms, lane=1):
        A = self.A
        first = True
        for lsb, width, sh in terms:
            if first:
                A(f"v_bfe_u32 v{dst}, v{lane}, {lsb}, {width}")
                if sh:
                    A(f"v_lshlrev_b32 v{dst}, {sh}, v{dst}")
                first = False
            else:
                A(f"v_bfe_u32 v{tmp}, v{lane}, {lsb}, {width}")
                A(f"v_lshl_add_u32 v{dst}, v{tmp}, {sh}, v{dst}")

    def stamp(self, idx):
        if self.o["stamps"]:
            self.A(f"s_memrealtime s[{4+2*idx}:{5+2*idx}]")

    def stamp_init(self):
        if self.o["stamps"]:
            for i in range(1, 14):
                self.A(f"s_mov_b32 s{4+2*i}, 0")
            self.A("s_mov_b32 s4, s100")

    def stamp_flush(self):
        if not self.o["stamps"]:
            return
        A = self.A
        A("s_memrealtime s[30:31]")
        A("s_mov_b64 exec, 1")
        A("s_waitcnt lgkmcnt(0)")
        A(f"s_mul_i32 {T[0]}, s2, 12")
        A(f"s_add_u32 {T[0]}, {T[0]}, s3")
        A(f"s_lshl_b32 {T[0]}, {T[0]}, 6")
        A(f"s_add_u32 {T[0]}, {T[0]}, {WS_ST:#x}")
        A("v_mov_b32 v20, 0")
        for q in range(4):
            for e in range(4):
                i = 4 * q + e
                A(f"v_mov_b32 v{16+e}, " + (f"s{4+2*i}" if i < 14 else "0"))
            A(f"buffer_store_dwordx4 v[16:19], v20, {WS}, {T[0]} offen offset:{16*q}")

    def maxtree(self, regs, dst):
        A = self.A
        regs = list(regs)
        if len(regs) == 1:
            return regs[0]
        if len(regs) == 2:
            A(f"v_max_u32 v{dst}, v{regs[0]}, v{regs[1]}")
            return dst
        A(f"v_max3_u32 v{dst}, v{regs[0]}, v{regs[1]}, v{regs[2]}")
        regs = regs[3:]
        while len(regs) >= 2:
            A(f"v_max3_u32 v{dst}, v{dst}, v{regs[0]}, v{regs[1]}")
            regs = regs[2:]
        if regs:
            A(f"v_max_u32 v{dst}, v{dst}, v{regs[0]}")
        return dst

    def poll(self, loads, regs, tmp, sent="-1", lds=False, restore=FULL, first=None):
        A = self.A
        L, D = A.newlabel("P"), A.newlabel("PD")
        if first:
            L0 = A.newlabel("P")
            A(f"s_mov_b32 {sCNT}, {first[1]}")
            A.label(L0)
            for l in first[0]:
                A(l)
            A("s_waitcnt vmcnt(0)")
            m = self.maxtree(regs, tmp)
            A(f"v_cmp_eq_u32 vcc, {sent}, v{m}")
            A(f"s_cbranch_vccz {D}")
            A("s_mov_b64 exec, vcc")
            A(f"s_sub_u32 {sCNT}, {sCNT}, 1")
            A(f"s_cbranch_scc0 {L0}")
        A(f"s_mov_b32 {sCNT}, {LIM_L if lds else LIM_G}")
        A.label(L)
        for l in loads:
            A(l)
        A("s_waitcnt lgkmcnt(0)" if lds else "s_waitcnt vmcnt(0)")
        m = self.maxtree(regs, tmp)
        A(f"v_cmp_eq_u32 vcc, {sent}, v{m}")
        A(f"s_cbranch_vccz {D}")
        if not lds:
            A("s_mov_b64 exec, vcc")
        A(f"s_sub_u32 {sCNT}, {sCNT}, 1")
        A(f"s_cbranch_scc0 {L}")
        A.label(D)
        if not lds:
            A(f"s_mov_b64 exec, {restore}")
        else:
            A("s_nop 0")

    def lds_wait(self, addr, n, va, vt):
        A = self.A
        A(f"v_mov_b32 v{va}, {addr:#x}")
        if n == 1:
            self.poll([f"ds_read_b32 v{vt}, v{va}"], [vt], vt + 1, lds=True)
        else:
            self.poll([f"ds_read_b128 {v(vt,4)}, v{va}"], list(range(vt, vt + 4)), vt + 4, lds=True)

    def lds_wait_w(self, base, va, vt):
        A = self.A
        A(f"s_lshl_b32 {T[11]}, {sW}, 2")
        A(f"s_add_u32 {T[11]}, {T[11]}, {base:#x}")
        A(f"v_mov_b32 v{va}, {T[11]}")
        self.poll([f"ds_read_b32 v{vt}, v{va}"], [vt], vt + 1, lds=True)

    def lds_set_w(self, base, va, vt):
        A = self.A
        A(f"s_lshl_b32 {T[11]}, {sW}, 2")
        A(f"s_add_u32 {T[11]}, {T[11]}, {base:#x}")
        A(f"v_mov_b32 v{va}, {T[11]}")
        A(f"v_mov_b32 v{vt}, 1")
        A(f"ds_write_b32 v{va}, v{vt}")

    def pub(self, stores):
        A = self.A
        if self.o["force_slow"]:
            for s in stores:
                A(s + " sc1")
            return
        Ls, Lb = A.newlabel("SLOW"), A.newlabel("BACK")
        A(f"s_cmp_eq_u32 {sMODE}, 1")
        A(f"s_cbranch_scc0 {Ls}")
        for s in stores:
            A(s)
        A.label(Lb)
        A("s_nop 0")
        self.deferred.append((Ls, [s + " sc1" for s in stores], Lb))

    def get_mode(self, va, vt):
        A = self.A
        self.lds_wait(F_MODE, 1, va, vt)
        A(f"v_readfirstlane_b32 {sMODE}, v{vt}")

    def rbf(self, d, s):
        self.A(f"v_cvt_pk_bf16_f32 v{d}, 0, v{s}")

    def selreduce(self, a, out):
        A = self.A
        for p in (0, 2):
            for k in range(4):
                A(f"v_permlane16_swap_b32 v{a[k]+p}, v{a[k]+p+1}")
        A(f"v_add_f32 v{a[0]}, v{a[0]}, v{a[1]+1}")
        A(f"v_add_f32 v{a[0]+2}, v{a[0]+2}, v{a[1]+3}")
        A(f"v_add_f32 v{a[2]}, v{a[2]}, v{a[3]+1}")
        A(f"v_add_f32 v{a[2]+2}, v{a[2]+2}, v{a[3]+3}")
        A(f"v_permlane32_swap_b32 v{a[0]}, v{a[0]+2}")
        A(f"v_permlane32_swap_b32 v{a[2]}, v{a[2]+2}")
        A(f"v_add_f32 v{out}, v{a[0]}, v{a[2]+2}")

    def treduce(self, r, out):
        A = self.A
        A(f"v_permlane32_swap_b32 v{r}, v{r+2}")
        A(f"v_permlane32_swap_b32 v{r+1}, v{r+3}")
        A(f"v_add_f32 v{r}, v{r}, v{r+2}")
        A(f"v_add_f32 v{r+1}, v{r+1}, v{r+3}")
        A(f"v_permlane16_swap_b32 v{r}, v{r+1}")
        A(f"v_add_f32 v{out}, v{r}, v{r+1}")

    def allred(self, op, r, t, rows=True):
        A = self.A
        A(f"{op}_dpp v{r}, v{r}, v{r} row_ror:4 row_mask:0xf bank_mask:0xf")
        A(f"{op}_dpp v{r}, v{r}, v{r} row_ror:8 row_mask:0xf bank_mask:0xf")
        if rows:
            for sw in ("v_permlane32_swap_b32", "v_permlane16_swap_b32"):
                A(f"v_mov_b32 v{t}, v{r}")
                A(f"{sw} v{t}, v{r}")
                A(f"{op} v{r}, v{r}, v{t}")

    def unpack(self, src, dst, n=4):
        A = self.A
        for p in range(n):
            A(f"v_lshlrev_b32 v{dst+2*p}, 16, v{src+p}")
            A(f"v_and_b32 v{dst+2*p+1}, 0xffff0000, v{src+p}")

    def ln(self, X, ONE, D, t, out):
        A = self.A
        for i in range(4):
            A(f"v_mfma_f32_16x16x32_bf16 {v(D,4)}, {v(ONE,4)}, {v(X+4*i,4)}, " + ("0" if i == 0 else v(D, 4)))
        for i in range(16):
            q = t + (i & 1)
            A(f"v_dot2_f32_bf16 v{q}, v{X+i}, v{X+i}, " + ("0" if i < 2 else f"v{q}"))
        self.unpack(X, out)
        A(f"v_add_f32 v{t}, v{t}, v{t+1}")
        self.allred("v_add_f32", D, t + 1, rows=False)
        self.allred("v_add_f32", t, t + 1)
        A(f"v_mul_f32 v{D}, {f32(1/512)}, v{D}")
        self.rbf(t + 2, D)
        A(f"v_mul_f32 v{D+1}, v{D}, v{D}")
        A(f"v_mul_f32 v{t}, {f32(1/512)}, v{t}")
        A(f"v_sub_f32 v{t}, v{t}, v{D+1}")
        A(f"v_max_f32 v{t}, 0, v{t}")
        self.rbf(t, t)
        A(f"v_add_f32 v{t}, {f32(1e-5)}, v{t}")
        self.rbf(t, t)
        A(f"v_sqrt_f32 v{t}, v{t}")
        for p in range(4):
            A(f"v_pk_add_f32 {v(out+2*p,2)}, {v(out+2*p,2)}, {v(t+2,2)} op_sel_hi:[1,0] neg_lo:[0,1] neg_hi:[0,1]")
        self.rbf(t, t)
        A(f"v_rcp_f32 v{t+4}, v{t}")
        for e in range(8):
            self.rbf(out + e, out + e)
        for p in range(4):
            A(f"v_pk_mul_f32 {v(out+2*p,2)}, {v(out+2*p,2)}, {v(t+4,2)} op_sel_hi:[1,0]")
        for e in range(8):
            self.rbf(out + e, out + e)

    def prep_mod(self, SH, SCL, sh_out, c1_out):
        A = self.A
        self.unpack(SCL, c1_out)
        self.unpack(SH, sh_out)
        for e in range(8):
            A(f"v_add_f32 v{c1_out+e}, 1.0, v{c1_out+e}")
        for e in range(8):
            self.rbf(c1_out + e, c1_out + e)

    def combine(self, LNV, C1, SH, out):
        A = self.A
        for p in range(4):
            A(f"v_pk_mul_f32 {v(LNV+2*p,2)}, {v(LNV+2*p,2)}, {v(C1+2*p,2)}")
        for e in range(8):
            self.rbf(LNV + e, LNV + e)
        for p in range(4):
            A(f"v_pk_add_f32 {v(LNV+2*p,2)}, {v(LNV+2*p,2)}, {v(SH+2*p,2)}")
        for p in range(4):
            A(f"v_cvt_pk_bf16_f32 v{out+p}, v{LNV+2*p}, v{LNV+2*p+1}")

    def dma(self, voff, srd, soff, ldsaddr_s, ldsconst):
        A = self.A
        A(f"s_add_u32 m0, {ldsaddr_s}, {ldsconst:#x}")
        pol = self.o["wpol"]
        A(f"buffer_load_dwordx4 v{voff}, {srd}, {soff} offen {pol} lds".replace("  ", " "))


    def mask(self, m, lo, hi=None):
        r = int(m[2:].split(":")[0])
        self.A(f"s_mov_b32 s{r}, {lo:#x}")
        self.A(f"s_mov_b32 s{r+1}, {(lo if hi is None else hi):#x}")

    def pack_dw(self, val, dst, t):
        A = self.A
        A(f"v_mov_b32_dpp v{t}, v{val} quad_perm:[1,0,3,2] row_mask:0xf bank_mask:0xf")
        A(f"v_cvt_pk_bf16_f32 v{dst}, v{val}, v{t}")

    def pack_x4(self, val, dst):
        A = self.A
        self.pack_dw(val, dst, dst + 1)
        for i in (1, 2, 3):
            A(f"v_mov_b32_dpp v{dst+i}, v{dst} row_shl:{2*i} row_mask:0xf bank_mask:0xf")

    def quad_x4(self, d):
        for i in (1, 2, 3):
            self.A(f"v_mov_b32_dpp v{d+i}, v{d} quad_perm:[{i},{i},{i},{i}] row_mask:0xf bank_mask:0xf")

    def silu(self):
        A = self.A
        self.unpack(164, 136)
        for e in range(8):
            A(f"v_mul_f32 v{144+e}, {f32(-LOG2E)}, v{136+e}")
        for e in range(8):
            A(f"v_exp_f32 v{144+e}, v{144+e}")
        for e in range(8):
            A(f"v_add_f32 v{144+e}, 1.0, v{144+e}")
        for e in range(8):
            A(f"v_rcp_f32 v{144+e}, v{144+e}")
        for e in range(8):
            A(f"v_mul_f32 v{136+e}, v{136+e}, v{144+e}")
        for p in range(4):
            A(f"v_cvt_pk_bf16_f32 v{16+p}, v{136+2*p}, v{137+2*p}")

    def qp(self):
        A = self.A
        self.lds_wait(F_JF, 1, 4, 12)
        A("v_lshlrev_b32 v4, 4, v1")
        A(f"s_lshl_b32 {T[0]}, {sB}, 10")
        A(f"s_add_u32 {T[0]}, {T[0]}, {sG}")
        A(f"s_add_u32 {T[1]}, {T[0]}, {G_QL:#x}")
        self.poll([f"buffer_load_dwordx4 v[16:19], v4, {WS}, {T[0]} offen offset:{G_Q} sc1"], [16, 17, 18, 19], 5,
                  first=None if self.o["force_slow"] else
                  ([f"buffer_load_dwordx4 v[16:19], v4, {WS}, {T[1]} offen sc1"], self.o["qlim"]))
        A(f"ds_write_b128 v4, v[16:19] offset:{QL}")
        self.stamp(4)

    def xt(self):
        A = self.A
        A(f"s_getreg_b32 {T[1]}, hwreg(HW_REG_XCC_ID)")
        A(f"s_and_b32 {T[1]}, {T[1]}, 0xf")
        A(f"s_add_u32 {T[0]}, {sG}, {G_XT:#x}")
        self.lane_addr(4, 5, [(0, 5, 2)])
        self.poll([f"buffer_load_dword v20, v4, {WS}, {T[0]} offen sc1"], [20], 5)
        A(f"v_cmp_ne_u32 vcc, {T[1]}, v20")
        A("s_cmp_eq_u64 vcc, 0")
        A(f"s_cselect_b32 {sMODE}, 1, 0")
        A(f"v_mov_b32 v20, {sMODE}")
        A(f"v_mov_b32 v4, {F_MODE:#x}")
        A("ds_write_b32 v4, v20")

    def mlred(self, rows):
        A = self.A
        A("v_max_f32_dpp v18, v16, v16 row_ror:4 row_mask:0xf bank_mask:0xf")
        A("v_max_f32_dpp v18, v18, v18 row_ror:8 row_mask:0xf bank_mask:0xf")
        if rows:
            A("v_mov_b32 v20, v18")
            A("v_permlane16_swap_b32 v20, v18")
            A("v_max_f32 v18, v18, v20")
        A("v_sub_f32 v16, v16, v18")
        A(f"v_mul_f32 v16, {f32(LOG2E)}, v16")
        A("v_exp_f32 v16, v16")
        A("v_mul_f32 v19, v16, v17")
        A("v_add_f32_dpp v19, v19, v19 row_ror:4 row_mask:0xf bank_mask:0xf")
        A("v_add_f32_dpp v19, v19, v19 row_ror:8 row_mask:0xf bank_mask:0xf")
        if rows:
            A("v_mov_b32 v20, v19")
            A("v_permlane16_swap_b32 v20, v19")
            A("v_add_f32 v19, v19, v20")

    def mlx(self):
        A = self.A
        self.get_mode(4, 12)
        self.lane_addr(4, 5, [(0, 4, 3)])
        self.lane_addr(12, 5, [(0, 5, 3)])
        A(f"v_mov_b32 v5, {F_CLR:#x}")
        A(f"s_lshl_b32 {T[0]}, {sB}, 8")
        A(f"s_add_u32 {T[0]}, {T[0]}, {sG}")
        A(f"s_add_u32 {T[0]}, {T[0]}, {G_ML:#x}")
        A(f"s_lshl_b32 {T[1]}, {sS}, 5")
        A(f"s_add_u32 {T[1]}, {T[1]}, {T[0]}")
        self.poll([f"ds_read_b64 v[16:17], v4 offset:{MLL}", "ds_read_b32 v18, v5"], [16, 17, 18], 19, lds=True)
        self.stamp(2)
        A("v_mov_b32 v21, v16")
        self.mlred(False)
        A("s_mov_b64 exec, 15")
        self.pub([f"buffer_store_dwordx2 v[18:19], v4, {WS}, {T[1]} offen"])
        A("s_mov_b64 exec, -1")
        self.poll([f"buffer_load_dwordx2 v[16:17], v12, {WS}, {T[0]} offen sc1"], [16, 17], 5)
        self.mlred(True)
        A("v_sub_f32 v21, v21, v18")
        A("v_rcp_f32 v19, v19")
        A(f"v_mul_f32 v21, {f32(LOG2E)}, v21")
        A("v_exp_f32 v21, v21")
        A("v_mul_f32 v21, v21, v19")
        A("v_min_u32 v21, 0xfffffffe, v21")
        A("s_mov_b64 exec, 0xffff")
        A(f"ds_write_b32 v9, v21 offset:{MLG}")
        A("s_mov_b64 exec, -1")
        self.stamp(3)

    def get_scl(self, S):
        A = self.A
        self.lane_addr(4, 5, [(0, 1, 3)])
        self.poll([f"ds_read_b64 {v(S+2*i,2)}, v4 offset:{MLG+16*i}" for i in range(4)], list(range(S, S + 8)), 5,
                  lds=True)

    def op_addr(self, t):
        A = self.A
        A(f"s_lshl_b32 {t}, {sX}, 5")
        A(f"s_lshl_b32 {T[11]}, {sB}, 3")
        A(f"s_add_u32 {t}, {t}, {T[11]}")
        A(f"s_add_u32 {t}, {t}, {sS}")
        A(f"s_lshl_b32 {t}, {t}, 2")
        A(f"s_add_u32 {t}, {t}, {sW}")
        A(f"s_lshl_b32 {t}, {t}, 9")
        A(f"s_add_u32 {t}, {t}, {WS_OP:#x}")
        A(f"s_lshl_b32 {T[11]}, {sW}, 9")
        A(f"v_add_u32 v13, {T[11]}, v6")

    def op_pub(self, t, S=24):
        A = self.A
        self.poll([f"ds_read_b64 {v(16+2*i,2)}, v13 offset:{RL+2048*i}" for i in range(4)], list(range(16, 24)), 5,
                  lds=True)
        A(f"v_pk_mul_f32 v[16:17], v[16:17], {v(S,2)}")
        A(f"v_pk_mul_f32 v[20:21], v[20:21], {v(S+4,2)}")
        A(f"v_pk_fma_f32 v[16:17], v[18:19], {v(S+2,2)}, v[16:17]")
        A(f"v_pk_fma_f32 v[20:21], v[22:23], {v(S+6,2)}, v[20:21]")
        A("v_pk_add_f32 v[16:17], v[16:17], v[20:21]")
        self.pub([f"buffer_store_dwordx2 v[16:17], v6, {WS}, {t} offen"])

    def xsum(self, soffs, out):
        A = self.A
        n = len(soffs)
        self.poll([f"buffer_load_dwordx4 {v(16+4*i,4)}, v11, {WS}, {soffs[i]} offen sc1" for i in range(n)],
                  list(range(16, 16 + 4 * n)), 5)
        self.sum4(n)
        self.treduce(16, out)

    def sum4(self, n):
        A = self.A
        A("v_pk_add_f32 v[16:17], v[16:17], v[20:21]")
        A("v_pk_add_f32 v[18:19], v[18:19], v[22:23]")
        if n == 4:
            A("v_pk_add_f32 v[24:25], v[24:25], v[28:29]")
            A("v_pk_add_f32 v[26:27], v[26:27], v[30:31]")
            A("v_pk_add_f32 v[16:17], v[16:17], v[24:25]")
            A("v_pk_add_f32 v[18:19], v[18:19], v[26:27]")

    def dry_begin(self, name):
        A = self.A
        if self.o["dry"]:
            A(f"s_mov_b64 {FULL}, 0")
            A("s_mov_b64 exec, 0")
            A(f"s_branch {name}_body")
        A.label(f"{name}_real")

    def dry_end(self, name):
        A = self.A
        A.label(f"{name}_end")
        if self.o["dry"]:
            A("s_cmp_lg_u32 s92, 0")
            A("s_cbranch_scc1 L_fin")
            A(f"s_mov_b64 {FULL}, -1")
            A("s_mov_b64 exec, -1")
            A(f"s_branch {name}_real")
        else:
            A("s_branch L_fin")

    def chain(self):
        A = self.A
        A.label("L_chain")
        if self.o["so"] == 1:
            A("s_barrier")
            A("s_branch L_end")
            return
        A("s_setprio 3")
        self.lane_addr(2, 4, [(0, 2, 10), (2, 2, 6), (4, 2, 4)])
        self.lane_addr(3, 4, [(2, 2, 8), (5, 1, 7), (0, 2, 5), (4, 1, 4)])
        A("v_lshlrev_b32 v6, 3, v1")
        A("v_lshlrev_b32 v8, 1, v1")
        A("v_lshlrev_b32 v9, 2, v1")
        self.lane_addr(11, 4, [(0, 3, 4)])
        self.lane_addr(5, 4, [(4, 1, 5)])
        A("v_xor_b32 v11, v11, v5")
        A("v_lshrrev_b32 v10, 3, v1")
        self.lane_addr(7, 4, [(4, 2, 10), (2, 2, 7), (0, 2, 3), (3, 2, 5)])
        A(f"s_cmp_ge_u32 {sJ}, 16")
        A("s_cbranch_scc1 L_chainA")
        self.chainB()
        self.chainA()

    def chainB(self):
        A = self.A
        WD = self.o["wdepth"]
        for i in range(4):
            A(f"s_add_u32 {T[4+i]}, {sW}, {i}")
            A(f"s_and_b32 {T[4+i]}, {T[4+i]}, 3")
            A(f"s_lshl_b32 {T[4+i]}, {T[4+i]}, 8")
        A(f"s_lshl_b32 {T[8]}, {sW}, 10")
        A(f"s_lshl_b32 {T[9]}, {sW}, 14")
        A(f"s_lshl_b32 {T[10]}, {sW}, 7")
        A(f"s_cmp_lt_u32 {sJ}, 2")
        A("s_cbranch_scc1 B_jan")
        A(f"s_sub_u32 {T[0]}, {sJ}, 4")
        A(f"s_cmp_lt_u32 {T[0]}, 8")
        A("s_cbranch_scc1 B_isq")
        A(f"s_lshl_b32 {T[0]}, {sX}, 1")
        A(f"s_add_u32 {T[0]}, {T[0]}, {sJ}")
        A(f"s_sub_u32 {T[0]}, {T[0]}, 2")
        A(f"s_lshl_b32 {T[1]}, {sX}, 2")
        A(f"s_add_u32 {T[1]}, {T[1]}, {sJ}")
        A(f"s_add_u32 {T[1]}, {T[1]}, 4")
        A(f"s_cmp_lt_u32 {sJ}, 4")
        A(f"s_cselect_b32 {T[0]}, {T[0]}, {T[1]}")
        A(f"s_movk_i32 {T[12]}, 6144")
        A(f"s_lshl_b32 {T[1]}, {T[0]}, 7")
        A(f"s_lshl_b32 {T[13]}, {T[0]}, 9")
        A(f"s_add_u32 {T[13]}, {T[13]}, {T[10]}")
        A(f"s_mov_b32 {T[14]}, 1")
        A("v_mov_b32 v14, v8")
        A("s_waitcnt lgkmcnt(0)")
        self.srd("SA_", "wmod", 512 * 3072 * 2)
        A("s_branch B_t64")
        A.label("B_isq")
        A(f"s_movk_i32 {T[12]}, 8192")
        A(f"s_lshl_b32 {T[1]}, {sX}, 10")
        A(f"s_lshl_b32 {T[2]}, {T[0]}, 7")
        A(f"s_add_u32 {T[1]}, {T[1]}, {T[2]}")
        A(f"s_lshl_b32 {T[13]}, {sW}, 5")
        A(f"s_add_u32 {T[13]}, {T[13]}, {T[2]}")
        A(f"s_add_u32 {T[13]}, {T[13]}, {sG}")
        A(f"s_mov_b32 {T[14]}, 0")
        self.lane_addr(14, 4, [(4, 2, 10), (0, 4, 1)])
        A("s_waitcnt lgkmcnt(0)")
        self.srd("SA_", "wq", 4096 * 512 * 2)
        A.label("B_t64")
        self.srd("SX_", "x", 4096)
        self.srd("SC_", "c", 4096)
        A(f"v_mul_u32_u24 v10, {T[12]}, v10")
        A("v_add_u32 v10, v10, v11")
        A("v_xor_b32 v11, 64, v10")
        A(f"s_mul_i32 {T[2]}, {T[10]}, {T[12]}")
        A(f"s_add_u32 {T[1]}, {T[1]}, {T[2]}")
        A(f"s_lshl_b32 {T[2]}, {T[12]}, 3")
        A(f"buffer_load_dwordx4 v[164:167], v2, {SC_}, {T[4]} offen")
        for i in range(4):
            A(f"buffer_load_dwordx4 {v(16+4*i,4)}, v2, {SX_}, {T[4+i]} offen")
        for i in range(WD):
            self.dma(10 + (i & 1), SA_, T[1], T[9], W0 + i * 1024)
            A(f"s_add_u32 {T[1]}, {T[1]}, {T[2]}")
        A("s_barrier")
        self.srd("WS", "ws", WS_SIZE)
        self.gu_srd()
        self.stamp_init()
        A(f"s_cmp_lt_u32 {sJ}, 4")
        A("s_cbranch_scc1 B_dmc")
        for var, dep in (("n", WD), ("c", self.o["mdepth"])):
            if var == "c":
                A.label("B_dmc")
            for i in range(WD, 16):
                if i >= dep:
                    A(f"s_waitcnt vmcnt({dep-1})")
                self.dma(10 + (i & 1), SA_, T[1], T[9], W0 + i * 1024)
                if i < 15:
                    A(f"s_add_u32 {T[1]}, {T[1]}, {T[2]}")
            if var == "n":
                A("s_branch B_dmd")
        A.label("B_dmd")
        self.lds_set_w(F_GO, 12, 13)
        for r in range(160, 164):
            A(f"v_mov_b32 v{r}, 0x3f803f80")
        A(f"v_add_u32 v7, {T[9]}, v7")
        A("s_waitcnt vmcnt(16)")
        A(f"s_cmp_eq_u32 {T[14]}, 0")
        A("s_cbranch_scc1 B_pq")
        self.silu()
        A("s_branch B_pd")
        A.label("B_pq")
        self.ln(16, 160, 32, 152, 128)
        A.label("B_pd")
        A("s_waitcnt vmcnt(0)")
        self.stamp(1)
        if self.o["so"] == 2:
            A("s_branch L_fin")
        for c in range(4):
            if c:
                A(f"v_xor_b32 v4, {c<<5}, v7")
            for kk in range(4):
                for hf in range(2):
                    A(f"ds_read_b64_tr_b16 {v(64+16*c+4*kk+2*hf,2)}, v{4 if c else 7} offset:{W0+kk*4096+hf*512}")
            A("s_waitcnt lgkmcnt(0)")
        A(f"s_cmp_lg_u32 {T[14]}, 0")
        A("s_cbranch_scc1 B_mm")
        self.lds_wait(F_JF, 1, 4, 12)
        self.stamp(2)
        A(f"s_add_u32 {T[0]}, {T[8]}, {32*128}")
        self.poll([f"buffer_load_dwordx4 v[16:19], v3, {WS}, {T[8]} offen sc1",
                   f"buffer_load_dwordx4 v[20:23], v3, {WS}, {T[0]} offen sc1"], list(range(16, 24)), 5)
        self.stamp(3)
        self.prep_mod(16, 20, 136, 144)
        self.combine(128, 144, 136, 16)
        A.label("B_mm")
        accb = [32, 48, 128, 144]
        for c in range(4):
            for kk in range(4):
                A(f"v_mfma_f32_16x16x32_bf16 {v(accb[c]+4*kk,4)}, v[16:19], {v(64+16*c+4*kk,4)}, 0")
        A(f"v_add_u32 v4, {T[8]}, v9")
        for c in range(4):
            self.selreduce([accb[c] + 4 * k for k in range(4)], 24 + c)
            A(f"ds_write_b32 v4, v{24+c} offset:{RED1+256*c}")
        A(f"s_lshl_b32 {T[0]}, {sW}, 8")
        A(f"v_add_u32 v4, {T[0]}, v9")
        A(f"v_mov_b32 v5, {F_JF:#x}")
        self.poll([f"ds_read_b32 v{24+i}, v4 offset:{RED1+1024*i}" for i in range(4)] + ["ds_read_b32 v28, v5"],
                  list(range(24, 29)), 29, lds=True)
        A("v_add_f32 v24, v24, v25")
        A("v_add_f32 v26, v26, v27")
        A("v_add_f32 v24, v24, v26")
        self.pack_x4(24, 28)
        A("s_mov_b32 exec_lo, 0x01010101")
        A("s_mov_b32 exec_hi, 0x01010101")
        A(f"s_cmp_lg_u32 {T[14]}, 0")
        A("s_cbranch_scc1 B_pub")
        A(f"s_add_u32 {T[0]}, {T[13]}, {G_QL:#x}")
        A(f"buffer_store_dwordx4 v[28:31], v14, {WS}, {T[0]} offen")
        A.label("B_pub")
        A(f"buffer_store_dwordx4 v[28:31], v14, {WS}, {T[13]} offen sc1")
        A("s_mov_b64 exec, -1")
        self.stamp(5)
        A("s_branch B_post")
        A.label("B_jan")
        A("v_lshlrev_b32 v4, 4, v1")
        for r in range(16, 20):
            A(f"v_mov_b32 v{r}, -1")
        A(f"s_lshl_b32 {T[0]}, {sJ}, 3")
        A(f"s_add_u32 {T[0]}, {T[0]}, {sW}")
        A(f"s_mul_i32 {T[0]}, {T[0]}, 3072")
        A(f"s_add_u32 {T[0]}, {T[0]}, {sG}")
        A(f"s_mul_i32 {T[1]}, {sX}, 3072")
        A(f"s_add_u32 {T[1]}, {T[1]}, {T[8]}")
        A(f"s_lshl_b32 {T[2]}, {sJ}, 2")
        A(f"s_add_u32 {T[2]}, {T[2]}, {sW}")
        A("s_waitcnt lgkmcnt(0)")
        self.srd("WS", "ws", WS_SIZE)
        if not self.o["nojan"]:
            A(f"s_cmp_ge_u32 {T[2]}, 3")
            A("s_cbranch_scc1 B_jan2")
            A(f"buffer_store_dwordx4 v[16:19], v4, {WS}, {T[1]} offen sc1")
            A.label("B_jan2")
            for i in range(3):
                A(f"buffer_store_dwordx4 v[16:19], v4, {WS}, {T[0]} offen offset:{1024*i} sc1")
        A("s_barrier")
        self.gu_srd()
        self.stamp_init()
        for r in range(160, 164):
            A(f"v_mov_b32 v{r}, 0x3f803f80")
        A("s_waitcnt vmcnt(0)")
        self.lds_set_w(F_J1, 12, 13)
        self.stamp(1)
        if self.o["so"] == 2:
            A("s_branch L_fin")
        A.label("B_post")
        A(f"s_cmp_lg_u32 {sW}, 3")
        A("s_cbranch_scc1 B_noq")
        self.qp()
        A.label("B_noq")
        self.lds_wait(F_JF, 1, 4, 12)
        self.lds_wait_w(F_KDONE, 4, 12)
        A(f"s_cmp_lg_u32 {sW}, 2")
        A("s_cbranch_scc1 B_nox2")
        self.xt()
        A.label("B_nox2")
        A(f"s_add_u32 {T[0]}, {T[8]}, {96*128}")
        A(f"s_add_u32 {T[1]}, {T[8]}, {128*128}")
        self.poll([f"buffer_load_dwordx4 v[16:19], v3, {WS}, {T[0]} offen sc1",
                   f"buffer_load_dwordx4 v[20:23], v3, {WS}, {T[1]} offen sc1"], list(range(16, 24)), 5)
        self.prep_mod(16, 20, 136, 144)
        A(f"s_cmp_lg_u32 {sW}, 3")
        A("s_cbranch_scc1 B_nox")
        self.mlx()
        A.label("B_nox")
        self.get_mode(4, 12)
        self.stamp(6)
        self.lane_addr(10, 4, [(4, 2, 3), (2, 2, 0)])
        A("v_mul_u32_u24 v10, 0xe00, v10")
        self.lane_addr(11, 4, [(0, 2, 4)])
        self.lane_addr(5, 4, [(4, 1, 5)])
        A("v_xor_b32 v11, v11, v5")
        A("v_add_u32 v10, v10, v11")
        self.lane_addr(7, 4, [(2, 4, 6), (4, 1, 5), (0, 2, 3)])
        A(f"v_add_u32 v7, {T[9]}, v7")
        A("v_xor_b32 v11, 32, v7")
        A(f"s_mul_i32 {T[1]}, {sW}, {128*3584}")
        A(f"s_mul_i32 {T[2]}, {sX}, 448")
        A(f"s_add_u32 {T[1]}, {T[1]}, {T[2]}")
        A(f"s_lshr_b32 {T[3]}, {sJ}, 1")
        A(f"s_lshl_b32 {T[2]}, {T[3]}, 6")
        A(f"s_add_u32 {T[12]}, {T[1]}, {T[2]}")
        A(f"s_lshl_b32 {T[13]}, {T[3]}, 8")
        A(f"s_and_b32 {T[14]}, {sJ}, 1")
        A(f"s_lshl_b32 {T[2]}, {T[14]}, 11")
        A(f"s_add_u32 {T[13]}, {T[13]}, {T[2]}")
        A(f"s_add_u32 {T[13]}, {T[13]}, {sG}")
        A(f"s_add_u32 {T[13]}, {T[13]}, {G_GL:#x}")
        for i in range(4):
            A(f"s_lshl_b32 {T[4+i]}, {T[4+i]}, 2")
            A(f"s_add_u32 {T[4+i]}, {T[4+i]}, {sG}")
            A(f"s_add_u32 {T[4+i]}, {T[4+i]}, {G_X1:#x}")
        A(f"s_lshl_b32 {T[10]}, {sW}, 9")
        A(f"v_add_u32 v9, {T[10]}, v6")
        self.mask(MA, 0x55555555)
        self.op_addr(T[15])
        self.dry_begin("TB")
        self.get_scl(24)
        self.stamp(12)
        self.op_pub(T[15])
        self.stamp(7)
        A(f"s_cmp_ge_u32 {sJ}, 14")
        A("s_cbranch_scc1 L_fin")
        for kk in range(4):
            for hf in range(2):
                A(f"s_add_u32 {T[1]}, {T[12]}, {(32*kk+4*hf)*3584:#x}")
                self.dma(10, SB_, T[1], T[9], W0 + (2 * kk + hf) * 1024)
        A("s_waitcnt vmcnt(0)")
        for c in range(2):
            for kk in range(4):
                for hf in range(2):
                    A(f"ds_read_b64_tr_b16 {v(64+16*c+4*kk+2*hf,2)}, v{11 if c else 7} offset:{W0+(2*kk+hf)*1024}")
            A("s_waitcnt lgkmcnt(0)")
        self.stamp(8)
        A.label("TB_body")
        self.poll([f"buffer_load_dwordx4 {v(16+4*i,4)}, v3, {WS}, {T[4+i]} offen sc1" for i in range(4)],
                  list(range(16, 32)), 5)
        self.stamp(9)
        self.ln(16, 160, 32, 152, 128)
        self.combine(128, 144, 136, 16)
        for c in range(2):
            for kk in range(4):
                A(f"v_mfma_f32_16x16x32_bf16 {v(32+16*c+4*kk,4)}, v[16:19], {v(64+16*c+4*kk,4)}, 0")
        self.selreduce([32, 36, 40, 44], 24)
        self.selreduce([48, 52, 56, 60], 25)
        A(f"s_cmp_eq_u32 {sW}, 0")
        A("s_cbranch_scc1 B_g0")
        A(f"ds_write_b64 v9, v[24:25] offset:{RED_GU}")
        A("s_branch TB_end")
        A.label("B_g0")
        self.stamp(10)
        self.poll([f"ds_read_b64 {v(24+2*i,2)}, v6 offset:{RED_GU+512*i}" for i in (1, 2, 3)], list(range(26, 32)), 5,
                  lds=True)
        A("v_pk_add_f32 v[24:25], v[24:25], v[26:27]")
        A("v_pk_add_f32 v[28:29], v[28:29], v[30:31]")
        A("v_pk_add_f32 v[24:25], v[24:25], v[28:29]")
        A(f"s_cmp_lg_u32 {T[14]}, 0")
        A("s_cbranch_scc1 B_up")
        k0 = 0.7978845608028654
        for r in (24, 25):
            self.rbf(r, r)
        for r in (24, 25):
            A(f"v_mul_f32 v{r+2}, v{r}, v{r}")
        for r in (24, 25):
            A(f"v_mul_f32 v{r+2}, {f32(-2*k0*0.044715*LOG2E)}, v{r+2}")
        for r in (24, 25):
            A(f"v_add_f32 v{r+2}, {f32(-2*k0*LOG2E)}, v{r+2}")
        for r in (24, 25):
            A(f"v_mul_f32 v{r+2}, v{r+2}, v{r}")
        for r in (24, 25):
            A(f"v_exp_f32 v{r+2}, v{r+2}")
        for r in (24, 25):
            A(f"v_add_f32 v{r+2}, 1.0, v{r+2}")
        for r in (24, 25):
            A(f"v_rcp_f32 v{r+2}, v{r+2}")
        for r in (24, 25):
            A(f"v_mul_f32 v{r}, v{r}, v{r+2}")
        A.label("B_up")
        A("v_mov_b32_dpp v26, v24 quad_perm:[1,0,3,2] row_mask:0xf bank_mask:0xf")
        A("v_mov_b32_dpp v27, v25 quad_perm:[1,0,3,2] row_mask:0xf bank_mask:0xf")
        A("v_cvt_pk_bf16_f32 v24, v24, v26")
        A("v_cvt_pk_bf16_f32 v25, v25, v27")
        A(f"s_and_b64 exec, {FULL}, {MA}")
        self.pub([f"buffer_store_dword v24, v8, {WS}, {T[13]} offen",
                  f"buffer_store_dword v25, v8, {WS}, {T[13]} offen offset:128"])
        self.stamp(11)
        self.dry_end("TB")

    def gu_srd(self):
        A = self.A
        l1, l2 = A.newlabel("GU"), A.newlabel("GU")
        A(f"s_bitcmp1_b32 {sJ}, 0")
        A(f"s_cbranch_scc1 {l1}")
        self.srd("SB_", "wg", 512 * 1792 * 2)
        A(f"s_branch {l2}")
        A.label(l1)
        self.srd("SB_", "wu", 512 * 1792 * 2)
        A.label(l2)
        A("s_nop 0")

    def chainA(self):
        A = self.A
        A.label("L_chainA")
        A(f"s_sub_u32 {T[10]}, {sJ}, 16")
        A("v_lshlrev_b32 v10, 13, v10")
        A("v_add_u32 v10, v10, v11")
        A("v_xor_b32 v11, 64, v10")
        A(f"s_lshl_b32 {T[1]}, {sX}, 9")
        A(f"s_lshr_b32 {T[12]}, {T[10]}, 3")
        A(f"s_lshl_b32 {T[2]}, {T[12]}, 2")
        A(f"s_add_u32 {T[1]}, {T[1]}, {T[2]}")
        A(f"s_add_u32 {T[1]}, {T[1]}, {sW}")
        A(f"s_lshl_b32 {T[1]}, {T[1]}, 10")
        A(f"s_and_b32 {T[13]}, {T[10]}, 7")
        A(f"s_lshl_b32 {T[2]}, {T[13]}, 7")
        A(f"s_add_u32 {T[1]}, {T[1]}, {T[2]}")
        A(f"s_lshl_b32 {T[2]}, {sW}, 13")
        A("s_waitcnt lgkmcnt(0)")
        self.srd("SA_", "wo", 4096 * 512 * 2)
        WD = self.o["wdepth"]
        n = 0
        for ki in range(2):
            for g in range(4):
                if n == min(WD, 7):
                    A("s_barrier")
                    self.srd("SB_", "wd", 512 * 1792 * 2)
                    self.srd("WS", "ws", WS_SIZE)
                    self.srd("SX_", "x", 4096)
                    self.srd("SOUT", "out", 4096)
                    self.stamp_init()
                if n >= WD:
                    A(f"s_waitcnt vmcnt({WD-1})")
                A(f"s_add_u32 {T[3]}, {T[1]}, {(128*g+64*ki)*1024:#x}")
                self.dma(10 + (g & 1), SA_, T[3], T[2], W0 + ki * 4096 + g * 1024)
                n += 1
        self.lane_addr(10, 4, [(4, 2, 13), (2, 2, 10), (0, 2, 4)])
        self.lane_addr(5, 4, [(4, 1, 5)])
        A("v_xor_b32 v10, v10, v5")
        A(f"s_mul_i32 {T[1]}, {sX}, {224*1024}")
        A(f"s_lshl_b32 {T[3]}, {T[10]}, 6")
        A(f"s_add_u32 {T[1]}, {T[1]}, {T[3]}")
        A(f"s_lshr_b32 {T[3]}, {sW}, 1")
        A(f"s_lshl_b32 {T[3]}, {T[3]}, 15")
        A(f"s_add_u32 {T[1]}, {T[1]}, {T[3]}")
        A(f"s_and_b32 {T[0]}, {sW}, 1")
        A(f"s_lshl_b32 {T[3]}, {T[0]}, 12")
        A(f"s_add_u32 {T[1]}, {T[1]}, {T[3]}")
        A(f"s_lshl_b32 {T[2]}, {sW}, 10")
        for i in range(4):
            if i == 3:
                A(f"s_cmp_ge_u32 {sW}, 2")
                A("s_cbranch_scc1 A_dn3")
            A(f"s_waitcnt vmcnt({max(WD-2-i, 1)})")
            self.dma(10, SB_, T[1], T[2], WDN + i * 4096)
            if i < 3:
                A(f"s_add_u32 {T[1]}, {T[1]}, {64*1024}")
        A.label("A_dn3")
        self.lds_set_w(F_GO, 12, 13)
        A(f"s_lshl_b32 {T[4]}, {T[10]}, 1")
        A(f"s_add_u32 {T[4]}, {T[4]}, {T[0]}")
        A(f"s_lshl_b32 {T[5]}, {T[4]}, 7")
        A(f"s_lshl_b32 {T[6]}, {T[4]}, 8")
        A(f"s_lshl_b32 {T[7]}, {T[4]}, 5")
        for i in range(4):
            A(f"s_add_u32 {T[16+i]}, {T[6]}, {WS_G+G_AP+(i&1)*0x40000+(i>>1)*0x2000:#x}")
        for i in range(2):
            A(f"s_add_u32 {T[20+i]}, {T[6]}, {WS_G+G_OPT+i*0x40000:#x}")
        A(f"s_add_u32 {T[22]}, {sG}, {T[5]}")
        A(f"s_add_u32 {T[22]}, {T[22]}, {G_X1:#x}")
        A(f"s_add_u32 {T[23]}, {sG}, {T[6]}")
        A(f"s_add_u32 {T[23]}, {T[23]}, {G_OPT:#x}")
        A(f"s_lshl_b32 {T[24]}, {T[13]}, 2")
        A(f"s_add_u32 {T[24]}, {T[24]}, {sW}")
        A(f"s_lshl_b32 {T[24]}, {T[24]}, 8")
        A(f"s_lshl_b32 {T[3]}, {T[12]}, 13")
        A(f"s_add_u32 {T[24]}, {T[24]}, {T[3]}")
        A(f"s_add_u32 {T[24]}, {T[24]}, {sG}")
        A(f"s_add_u32 {T[24]}, {T[24]}, {G_AP:#x}")
        A(f"s_lshl_b32 {T[25]}, {T[12]}, 9")
        A(f"s_add_u32 {T[25]}, {T[25]}, {sG}")
        A(f"s_add_u32 {T[25]}, {T[25]}, {G_O:#x}")
        A(f"s_add_u32 {T[26]}, {sG}, {G_GL:#x}")
        self.lane_addr(131, 4, [(2, 2, 10), (0, 2, 3), (4, 2, 1)])
        self.lane_addr(132, 4, [(0, 4, 3), (4, 2, 1)])
        self.lane_addr(11, 4, [(4, 2, 16), (0, 4, 4)])
        self.lane_addr(133, 4, [(4, 2, 4), (0, 3, 1)])
        A("v_bfe_u32 v4, v1, 2, 2")
        A("v_min_u32 v4, 2, v4")
        self.lane_addr(134, 5, [(5, 1, 7), (0, 2, 5), (4, 1, 4)])
        A("v_lshl_add_u32 v134, v4, 8, v134")
        A("s_waitcnt vmcnt(0)")
        self.lds_set_w(F_WD, 4, 5)
        self.stamp(1)
        if self.o["so"] == 2:
            A("s_branch L_fin")
        self.lds_wait(F_WD, 4, 4, 12)
        A(f"s_lshl_b32 {T[1]}, {sW}, 5")
        A(f"v_xor_b32 v7, {T[1]}, v7")
        for o in range(8):
            for hf in range(2):
                A(f"ds_read_b64_tr_b16 {v(64+4*o+2*hf,2)}, v7 offset:{W0+o*4096+hf*512}")
            if o == 3:
                A("s_waitcnt lgkmcnt(0)")
        A("s_waitcnt lgkmcnt(0)")
        self.lane_addr(7, 4, [(2, 4, 6), (4, 1, 5), (0, 2, 3)])
        A(f"s_lshl_b32 {T[1]}, {T[0]}, 5")
        A(f"v_xor_b32 v7, {T[1]}, v7")
        A(f"v_add_u32 v7, {WDN:#x}, v7")
        for kb in range(7):
            for hf in range(2):
                A(f"ds_read_b64_tr_b16 {v(96+4*kb+2*hf,2)}, v7 offset:{(2*kb+hf)*1024}")
        A("s_waitcnt lgkmcnt(0)")
        A(f"s_cmp_lg_u32 {sW}, 3")
        A("s_cbranch_scc1 A_noq")
        self.qp()
        self.mlx()
        A("s_branch A_now")
        A.label("A_noq")
        self.lds_wait(F_JF, 1, 4, 12)
        self.lds_wait_w(F_KDONE, 4, 12)
        A(f"s_cmp_lg_u32 {sW}, 2")
        A("s_cbranch_scc1 A_g")
        self.xt()
        A("s_branch A_now")
        A.label("A_g")
        A(f"buffer_load_ushort v128, v131, {SX_}, {T[7]} offen")
        A(f"s_add_u32 {T[0]}, {T[5]}, {64*128}")
        A(f"s_add_u32 {T[1]}, {T[5]}, {160*128}")
        self.poll([f"buffer_load_ushort v129, v132, {WS}, {T[0]} offen sc1",
                   f"buffer_load_ushort v130, v132, {WS}, {T[1]} offen sc1"], [129, 130], 5, sent="0xffff")
        for r in (128, 129, 130):
            A(f"v_lshlrev_b32 v{r}, 16, v{r}")
        A.label("A_now")
        self.get_mode(4, 12)
        self.lane_addr(10, 4, [(3, 3, 11), (0, 3, 4)])
        A(f"s_lshl_b32 {T[0]}, {sX}, 2")
        A(f"s_add_u32 {T[0]}, {T[0]}, {sB}")
        A(f"s_lshl_b32 {T[0]}, {T[0]}, 14")
        A(f"s_sub_u32 {T[9]}, {sS}, 4")
        A(f"s_lshl_b32 {T[1]}, {T[9]}, 9")
        A(f"s_add_u32 {T[0]}, {T[0]}, {T[1]}")
        A(f"s_lshl_b32 {T[1]}, {sW}, 7")
        A(f"s_add_u32 {T[0]}, {T[0]}, {T[1]}")
        A(f"s_add_u32 {T[0]}, {T[0]}, {WS_OP:#x}")
        self.op_addr(T[15])
        A(f"s_lshl_b32 {T[8]}, {sB}, 10")
        A(f"s_lshl_b32 {T[9]}, {T[9]}, 8")
        A(f"s_add_u32 {T[8]}, {T[8]}, {T[9]}")
        A(f"s_lshl_b32 {T[9]}, {sW}, 6")
        A(f"s_add_u32 {T[8]}, {T[8]}, {T[9]}")
        A(f"s_add_u32 {T[8]}, {T[8]}, {sG}")
        A(f"s_add_u32 {T[8]}, {T[8]}, {G_O:#x}")
        self.mask(MA, 0x00550055)
        self.mask(MB_, 0x11111111)
        self.mask(MC, 0x0000ffff)
        self.stamp(5)
        self.dry_begin("TA")
        self.get_scl(24)
        self.stamp(12)
        A.label("TA_body")
        self.op_pub(T[15])
        self.stamp(6)
        self.poll([f"buffer_load_dwordx4 v[16:19], v10, {WS}, {T[0]} offen sc1"], list(range(16, 20)), 5)
        self.stamp(7)
        self.treduce(16, 20)
        A("v_add_f32_dpp v20, v20, v20 row_ror:8 row_mask:0xf bank_mask:0xf")
        self.pack_dw(20, 20, 21)
        A(f"s_and_b64 exec, {FULL}, {MA}")
        self.pub([f"buffer_store_dword v20, v133, {WS}, {T[8]} offen"])
        A(f"s_mov_b64 exec, {FULL}")
        self.poll([f"buffer_load_dwordx4 {v(16+4*t,4)}, v2, {WS}, {T[25]} offen offset:{256*t} sc1" for t in range(2)],
                  list(range(16, 24)), 5)
        self.stamp(8)
        for t in range(2):
            for kk in range(4):
                A(f"v_mfma_f32_16x16x32_bf16 {v(32+4*kk,4)}, {v(16+4*t,4)}, {v(64+16*t+4*kk,4)}, " +
                  ("0" if t == 0 else v(32 + 4 * kk, 4)))
        self.selreduce([32, 36, 40, 44], 48)
        self.quad_x4(48)
        A(f"s_and_b64 exec, {FULL}, {MB_}")
        A(f"buffer_store_dwordx4 v[48:51], v9, {WS}, {T[24]} offen sc1")
        A(f"s_mov_b64 exec, {FULL}")
        self.stamp(9)
        A(f"s_cmp_ge_u32 {sW}, 2")
        A("s_cbranch_scc1 A_down")
        self.xsum(T[16:20], 24)
        self.stamp(10)
        self.rbf(24, 24)
        A("v_mul_f32 v24, v24, v129")
        self.rbf(24, 24)
        A("v_add_f32 v24, v24, v128")
        A("v_mov_b32 v25, v24")
        self.rbf(135, 24)
        A("v_permlane16_swap_b32 v24, v25")
        A("v_cvt_pk_bf16_f32 v24, v24, v25")
        A(f"s_and_b64 exec, {FULL}, {MC}")
        self.pub([f"buffer_store_dword v24, v132, {WS}, {T[22]} offen"])
        A(f"s_mov_b64 exec, {FULL}")
        A(f"s_cmp_lg_u32 {T[13]}, {sX}")
        A("s_cbranch_scc1 TA_end")
        self.xsum(T[20:22], 24)
        self.stamp(11)
        self.rbf(24, 24)
        A("v_mul_f32 v24, v24, v130")
        self.rbf(24, 24)
        A("v_add_f32 v24, v24, v135")
        self.rbf(24, 24)
        A(f"buffer_store_short_d16_hi v24, v131, {SOUT}, {T[7]} offen")
        A("s_branch TA_end")
        A.label("A_down")
        self.poll([f"buffer_load_dwordx4 v[16:19], v3, {WS}, {T[26]} offen sc1",
                   f"buffer_load_dwordx4 v[20:23], v134, {WS}, {T[26]} offen offset:1024 sc1",
                   f"buffer_load_dwordx4 v[24:27], v3, {WS}, {T[26]} offen offset:2048 sc1",
                   f"buffer_load_dwordx4 v[28:31], v134, {WS}, {T[26]} offen offset:3072 sc1"], list(range(16, 32)), 5)
        self.stamp(10)
        for t in range(2):
            self.unpack(16 + 4 * t, 136)
            self.unpack(24 + 4 * t, 144)
            for p in range(4):
                A(f"v_pk_mul_f32 {v(136+2*p,2)}, {v(136+2*p,2)}, {v(144+2*p,2)}")
            for p in range(4):
                A(f"v_cvt_pk_bf16_f32 v{16+4*t+p}, v{136+2*p}, v{137+2*p}")
            for kk in range(4 if t == 0 else 3):
                A(f"v_mfma_f32_16x16x32_bf16 {v(32+4*kk,4)}, {v(16+4*t,4)}, {v(96+16*t+4*kk,4)}, " +
                  ("0" if t == 0 else v(32 + 4 * kk, 4)))
        self.selreduce([32, 36, 40, 44], 48)
        self.quad_x4(48)
        A(f"s_and_b64 exec, {FULL}, {MB_}")
        A(f"buffer_store_dwordx4 v[48:51], v9, {WS}, {T[23]} offen sc1")
        self.stamp(11)
        self.dry_end("TA")

    def kv_base(self):
        A = self.A
        A(f"s_lshl_b32 {T[0]}, {sB}, 3")
        A(f"s_add_u32 {T[0]}, {T[0]}, {sX}")
        A(f"s_lshl_b32 {T[0]}, {T[0]}, 22")
        A(f"s_lshl_b32 {T[1]}, {sS}, 17")
        A(f"s_add_u32 {T[0]}, {T[0]}, {T[1]}")
        A(f"s_add_u32 {T[0]}, {T[0]}, 0x300000")
        A(f"s_mul_i32 {T[1]}, {sX}, {self.o['rx']}")
        A(f"s_mul_i32 {T[2]}, {sB}, {self.o['rb']}")
        A(f"s_add_u32 {T[1]}, {T[1]}, {T[2]}")
        A(f"s_mul_i32 {T[2]}, {sS}, {self.o['rs']}")
        A(f"s_add_u32 {T[1]}, {T[1]}, {T[2]}")
        A(f"s_mul_i32 {T[2]}, {sW}, {8 if self.o['blocked'] else 1}")
        A(f"s_add_u32 {T[1]}, {T[1]}, {T[2]}")

    def tile_off(self, tau):
        A = self.A
        A(f"s_add_u32 {T[2]}, {T[1]}, {tau if self.o['blocked'] else 4*tau}")
        A(f"s_and_b32 {T[2]}, {T[2]}, 31")
        A(f"s_lshl_b32 {T[2]}, {T[2]}, 12")
        A(f"s_add_u32 {T[2]}, {T[2]}, {T[0]}")

    def kwave(self):
        A = self.A
        D = self.o["depth"]
        KB = 40
        A.label("L_k")
        self.lane_addr(2, 4, [(1, 1, 10), (2, 2, 8), (0, 1, 6), (4, 2, 4)])
        self.kv_base()
        A("s_waitcnt lgkmcnt(0)")
        self.srd("SA_", "k", 0x8000000)
        self.srd("WS", "ws", WS_SIZE)
        self.stamp_init()
        A("s_barrier")
        if self.o["so"] != 1:
            self.lds_wait_w(F_GO, 3, 8)
        self.stamp(7)
        for i in range(32):
            tau, u = i >> 2, i & 3
            if u == 0:
                self.tile_off(tau)
            if i >= D:
                A(f"s_waitcnt vmcnt({D-1})")
            A(f"buffer_load_dwordx4 {v(KB+4*i,4)}, v2, {SA_}, {T[2]} offen offset:{2048*(u>>1)+128*(u&1)} nt")
            if i == 16:
                A(f"v_mov_b32 v3, {F_KHALF:#x}")
                A("ds_write_b32 v3, v3")
        self.lds_set_w(F_KDONE, 3, 4)
        self.stamp(1)
        if self.o["so"]:
            A("s_waitcnt vmcnt(0)")
            A("s_branch L_fin")
            return
        self.lane_addr(5, 4, [(4, 2, 6), (0, 2, 4), (2, 2, 2)])
        A(f"s_lshl_b32 {T[3]}, {sW}, 10")
        A(f"v_add_u32 v5, {T[3]}, v5")
        A(f"s_lshl_b32 {T[3]}, {sW}, 5")
        A("v_lshlrev_b32 v6, 3, v1")
        A(f"v_add_u32 v6, {T[3]}, v6")
        self.lane_addr(3, 4, [(0, 2, 8), (2, 1, 6), (4, 2, 4)])
        self.poll([f"ds_read_b128 {v(8+4*u,4)}, v3 offset:{QL+128*u}" for u in range(2)], list(range(8, 16)), 4, lds=True)
        self.stamp(2)
        dbuf = [16, 20, 32, 36]
        pend = []
        for dl in range(16):
            jj, c = dl >> 2, dl & 3
            if dl % 2 == 0:
                A(f"s_waitcnt vmcnt({28-2*dl})")
            d = dbuf[dl & 3]
            for uu in range(2):
                A(f"v_mfma_f32_16x16x32_bf16 {v(d,4)}, {v(KB+8*dl+4*uu,4)}, {v(8+4*uu,4)}, " + ("0" if uu == 0 else v(d, 4)))
            cur = []
            for rho in range(2):
                own, oth = (d + 2 * rho, d + 2 * rho + 1) if c % 2 == 0 else (d + 2 * rho + 1, d + 2 * rho)
                ror = 12 if c % 2 == 0 else 4
                cur.append(f"v_add_f32_dpp v{24+2*jj+rho}, v{oth}, v{own} row_ror:{ror} row_mask:0xf bank_mask:{1<<c:#x}")
            pend.append(cur)
            if len(pend) > 2:
                for l in pend.pop(0):
                    A(l)
        for cur in pend:
            for l in cur:
                A(l)
        self.stamp(3)
        for e in range(8):
            self.rbf(24 + e, 24 + e)
        for e in range(8):
            A(f"v_mul_f32 v{24+e}, {f32(0.08838834764831845)}, v{24+e}")
        for e in range(8):
            self.rbf(24 + e, 24 + e)
        A("v_max3_f32 v32, v24, v25, v26")
        A("v_max3_f32 v33, v27, v28, v29")
        A("v_max3_f32 v32, v32, v30, v31")
        A("v_max_f32 v32, v32, v33")
        self.allred("v_max_f32", 32, 34)
        for e in range(8):
            A(f"v_sub_f32 v{24+e}, v{24+e}, v32")
        for e in range(8):
            A(f"v_mul_f32 v{24+e}, {f32(LOG2E)}, v{24+e}")
        for e in range(8):
            A(f"v_exp_f32 v{24+e}, v{24+e}")
        for p in range(4):
            A(f"v_cvt_pk_bf16_f32 v{8+p}, v{24+2*p}, v{25+2*p}")
        for p in range(4):
            A(f"v_min_u32 v{8+p}, 0xfffffffe, v{8+p}")
        for jj in range(4):
            A(f"ds_write_b32 v5, v{8+jj} offset:{PL+256*jj}")
        self.stamp(4)
        A("v_add_f32 v33, v24, v25")
        A("v_add_f32 v34, v26, v27")
        A("v_add_f32 v35, v28, v29")
        A("v_add_f32 v36, v30, v31")
        A("v_add_f32 v33, v33, v34")
        A("v_add_f32 v35, v35, v36")
        A("v_add_f32 v33, v33, v35")
        self.allred("v_add_f32", 33, 34)
        A("v_min_u32 v32, 0xfffffffe, v32")
        A("v_min_u32 v33, 0xfffffffe, v33")
        A("s_mov_b64 exec, 15")
        A(f"ds_write_b64 v6, v[32:33] offset:{MLL}")
        A("s_branch L_fin")

    def pmask(self, P, PM=40):
        for g in range(4):
            for i in range(4):
                self.A(f"v_mov_b32_dpp v{PM+4*g+i}, v{P+i} quad_perm:[0,1,2,3] row_mask:0xf bank_mask:{1<<g:#x}")

    def pv(self, buf, first, TB=56, ACC=24, PM=40):
        A = self.A
        for n, j in enumerate((0, 2, 1, 3)):
            t = TB + 8 * (n & 1)
            for p in range(4):
                A(f"v_perm_b32 v{t+p}, v{buf+4*(2*p+1)+j}, v{buf+4*(2*p)+j}, {T[8]}")
            for p in range(4):
                A(f"v_perm_b32 v{t+4+p}, v{buf+4*(2*p+1)+j}, v{buf+4*(2*p)+j}, {T[9]}")
            for hh in range(2):
                a = ACC + 4 * (j >> 1)
                g = 2 * (j & 1) + hh
                A(f"v_mfma_f32_16x16x32_bf16 {v(a,4)}, {v(PM+4*g,4)}, {v(t+4*hh,4)}, " +
                  ("0" if first and g == 0 else v(a, 4)))

    def vwave(self):
        A = self.A
        D = self.o["vdepth"] or self.o["depth"]
        VB = 72
        A.label("L_v")
        A("v_lshlrev_b32 v2, 4, v1")
        for r in range(4, 8):
            A(f"v_mov_b32 v{r}, -1")
        A(f"s_mul_i32 {T[3]}, {sW}, 5120")
        A(f"v_add_u32 v3, {T[3]}, v2")
        for i in range(5):
            A(f"ds_write_b128 v3, v[4:7] offset:{SM+1024*i}")
        A(f"s_mul_i32 {T[3]}, {sW}, 3072")
        A(f"s_mul_i32 {T[5]}, {sJ}, {8*3072}")
        A(f"s_add_u32 {T[3]}, {T[3]}, {T[5]}")
        A(f"s_add_u32 {T[3]}, {T[3]}, {sG}")
        A(f"s_add_u32 {T[3]}, {T[3]}, {4*3072}")
        A("s_waitcnt lgkmcnt(0)")
        self.srd("WS", "ws", WS_SIZE)
        A(f"s_cmp_ge_u32 {sJ}, {0 if self.o['nojan'] else 2}")
        A("s_cbranch_scc1 V_noj")
        for i in range(3):
            A(f"buffer_store_dwordx4 v[4:7], v2, {WS}, {T[3]} offen offset:{1024*i} sc1")
        A.label("V_noj")
        A("s_barrier")
        self.srd("DBG", "dbg", 256)
        self.srd("SA_", "v", 0x8000000)
        self.stamp_init()
        A(f"s_cmp_ge_u32 {sJ}, {0 if self.o['so'] == 1 else 2}")
        A("s_cbranch_scc1 V_noj2")
        A("s_waitcnt vmcnt(0)")
        self.lds_set_w(F_J2, 3, 8)
        A(f"s_cmp_lg_u32 {sW}, 0")
        A("s_cbranch_scc1 V_noj2")
        A(f"v_mov_b32 v3, {F_J1:#x}")
        self.poll(["ds_read_b128 v[8:11], v3", "ds_read_b128 v[12:15], v3 offset:16"], list(range(8, 16)), 16, lds=True)
        self.stamp(8)
        A(f"s_lshl_b32 {T[3]}, {sX}, 1")
        A(f"s_add_u32 {T[3]}, {T[3]}, {sJ}")
        A(f"s_lshl_b32 {T[3]}, {T[3]}, 2")
        A("v_mov_b32 v3, 0")
        A("s_mov_b64 exec, 1")
        A(f"buffer_store_dword v8, v3, {DBG}, {T[3]} offen sc1")
        A("s_mov_b64 exec, -1")
        A(f"v_mov_b32 v3, {F_GO:#x}")
        A("ds_write_b128 v3, v[8:11]")
        A.label("V_noj2")
        A(f"s_lshl_b32 {T[4]}, {sW}, 10")
        A(f"s_cmp_eq_u32 {sW}, 1")
        A("s_cbranch_scc1 V_clr")
        A(f"s_cmp_lg_u32 {sW}, 0")
        A("s_cbranch_scc1 V_nodbg")
        A(f"s_cmp_lt_u32 {sJ}, {self.o['early']}")
        A("s_cbranch_scc1 V_early")
        A(f"s_cmp_lt_u32 {sJ}, {0 if self.o['so'] == 1 else self.o['jfgo']}")
        A(f"s_cselect_b32 {T[3]}, 0, {F_KHALF-F_GO}")
        A(f"v_mov_b32 v3, {T[3]}")
        self.poll([f"ds_read_b32 v8, v3 offset:{F_GO}"], [8], 9, lds=True)
        A.label("V_early")
        L, Dn = A.newlabel("P"), A.newlabel("PD")
        A(f"s_mov_b32 {sCNT}, {LIM_G}")
        A("s_mov_b64 exec, 15")
        if self.o["nojan"] or self.o["so"] == 1:
            A(f"s_branch {Dn}")
        A.label(L)
        A(f"buffer_load_dwordx4 v[8:11], v2, {DBG}, 0 offen sc1")
        A("s_waitcnt vmcnt(0)")
        A("v_min3_u32 v8, v8, v9, v10")
        A("v_min_u32 v8, v8, v11")
        A("v_cmp_eq_u32 vcc, 0, v8")
        A(f"s_cbranch_vccz {Dn}")
        A(f"s_sub_u32 {sCNT}, {sCNT}, 1")
        A(f"s_cbranch_scc0 {L}")
        A.label(Dn)
        A("s_mov_b64 exec, 1")
        A(f"v_mov_b32 v3, {F_JF:#x}")
        A("ds_write_b32 v3, v3")
        self.stamp(9)
        A(f"s_getreg_b32 {T[5]}, hwreg(HW_REG_XCC_ID)")
        A(f"s_and_b32 {T[5]}, {T[5]}, 0xf")
        A(f"s_lshl_b32 {T[3]}, {sJ}, 2")
        A(f"s_add_u32 {T[3]}, {T[3]}, {sG}")
        A(f"s_add_u32 {T[3]}, {T[3]}, {G_XT:#x}")
        A(f"v_mov_b32 v8, {T[5]}")
        A(f"buffer_store_dword v8, v2, {WS}, {T[3]} offen sc1")
        A("s_mov_b64 exec, -1")
        A("s_branch V_nodbg")
        A.label("V_clr")
        A(f"s_lshl_b32 {T[7]}, {sX}, 2")
        A(f"s_add_u32 {T[7]}, {T[7]}, {sB}")
        A(f"s_lshl_b32 {T[7]}, {T[7]}, 3")
        A(f"s_add_u32 {T[7]}, {T[7]}, {sS}")
        A(f"s_lshl_b32 {T[7]}, {T[7]}, 11")
        A(f"s_add_u32 {T[7]}, {T[7]}, {WS_OP:#x}")
        if not self.o["noop"]:
            A(f"buffer_store_dwordx4 v[4:7], v2, {WS}, {T[7]} offen sc1")
            A(f"buffer_store_dwordx4 v[4:7], v2, {WS}, {T[7]} offen offset:1024 sc1")
        A("s_waitcnt vmcnt(0)")
        A(f"v_mov_b32 v3, {F_CLR:#x}")
        A("ds_write_b32 v3, v3")
        A.label("V_nodbg")
        self.stamp(1)
        self.kv_base()
        A(f"s_mov_b32 {T[8]}, 0x05040100")
        A(f"s_mov_b32 {T[9]}, 0x07060302")
        A(f"s_lshl_b32 {T[10]}, {sW}, 13")
        A(f"s_add_u32 {T[10]}, {T[10]}, {VL:#x}")
        for r in range(40, 56):
            A(f"v_mov_b32 v{r}, 0")
        self.lds_wait_w(F_KDONE, 3, 8)
        self.stamp(2)
        for i in range(32):
            if i & 3 == 0:
                self.tile_off(i >> 2)
                if i < 8:
                    A(f"s_add_u32 m0, {T[10]}, {1024*i}")
            if i >= D:
                A(f"s_waitcnt vmcnt({D-1})")
            if i < 8:
                A(f"buffer_load_dwordx4 v2, {SA_}, {T[2]} offen offset:{1024*(i&3)} nt lds")
            else:
                A(f"buffer_load_dwordx4 {v(VB+4*(i-8),4)}, v2, {SA_}, {T[2]} offen offset:{1024*(i&3)} nt")
        self.stamp(3)
        if self.o["so"]:
            A("s_waitcnt vmcnt(0)")
            A("s_branch L_fin")
            return
        self.lane_addr(3, 4, [(4, 2, 6), (0, 2, 4)])
        A(f"v_add_u32 v3, {T[4]}, v3")
        self.poll([f"ds_read_b128 {v(8+4*b,4)}, v3 offset:{PL+256*b}" for b in range(4)], list(range(8, 24)), 4, lds=True)
        self.stamp(4)
        A(f"v_add_u32 v3, {T[10]}, v2")
        self.pmask(12)
        A("s_waitcnt vmcnt(16)")
        self.pv(VB, True)
        for i in range(8):
            A(f"ds_read_b128 {v(VB+4*i,4)}, v3 offset:{1024*i}")
        self.pmask(16)
        A("s_waitcnt vmcnt(8)")
        self.pv(VB + 32, False)
        self.pmask(8)
        A("s_waitcnt lgkmcnt(0)")
        self.pv(VB, False)
        self.pmask(20)
        self.stamp(5)
        A(f"s_lshl_b32 {T[11]}, {sW}, 11")
        A(f"v_add_u32 v3, {T[11]}, v2")
        A("s_waitcnt vmcnt(0)")
        self.stamp(6)
        self.pv(VB + 64, False)
        A(f"ds_write_b128 v3, v[24:27] offset:{RL}")
        A(f"ds_write_b128 v3, v[28:31] offset:{RL+1024}")
        self.stamp(7)
        A("s_branch L_fin")

    def build(self):
        A = self.A
        if self.o["stamps"]:
            A("s_memrealtime s[100:101]")
        A("s_cmp_ge_u32 s2, 256")
        A("s_cbranch_scc1 L_end")
        A("s_load_dwordx16 s[4:19], s[0:1], 0")
        A("s_load_dwordx8 s[20:27], s[0:1], 64")
        A("s_load_dwordx4 s[28:31], s[0:1], 96")
        A("v_and_b32 v1, 63, v0")
        A("v_lshrrev_b32 v2, 6, v0")
        A("v_readfirstlane_b32 s3, v2")
        A(f"s_and_b32 {sX}, s2, 7")
        A(f"s_lshr_b32 {sJ}, s2, 3")
        A(f"s_and_b32 {sB}, {sJ}, 3")
        A(f"s_lshr_b32 {sS}, {sJ}, 2")
        A(f"s_add_u32 {sG}, {sX}, 1")
        A(f"s_lshl_b32 {sG}, {sG}, 16")
        A(f"s_mov_b64 {FULL}, -1")
        A(f"s_mov_b32 {sMODE}, 0")
        A(f"s_and_b32 {sW}, s3, 3")
        A("s_cmp_ge_u32 s3, 8")
        A("s_cbranch_scc1 L_v")
        A("s_cmp_ge_u32 s3, 4")
        A("s_cbranch_scc1 L_k")
        self.chain()
        self.kwave()
        self.vwave()
        for Ls, stores, Lb in self.deferred:
            A.label(Ls)
            for s in stores:
                A(s)
            A(f"s_branch {Lb}")
        A.label("L_fin")
        self.stamp_flush()
        A.label("L_end")
        A("s_endpgm")
        body = A.finish()
        ref = open(f"cdna_kernels/{KNAME}.s.ref").read().split("\n")
        head = []
        for l in ref:
            if l.startswith("; @launch"):
                head.append(f"; @launch grid=(256,1,1) block=(768,1,1) lds={LDS_SIZE}")
            elif l.startswith(";"):
                head.append(l)
            else:
                break
        out = head + ['.amdgcn_target "amdgcn-amd-amdhsa--gfx950"', ".text", f".globl {KNAME}_kernel", ".p2align 8",
                      f".type {KNAME}_kernel,@function", f"{KNAME}_kernel:"] + body
        out += ['.section .rodata,"a"', ".p2align 6", f".amdhsa_kernel {KNAME}_kernel",
                "  .amdhsa_next_free_vgpr 168", "  .amdhsa_next_free_sgpr 102", "  .amdhsa_accum_offset 168",
                "  .amdhsa_group_segment_fixed_size 0", "  .amdhsa_kernarg_size 112", "  .amdhsa_user_sgpr_count 2",
                "  .amdhsa_user_sgpr_kernarg_segment_ptr 1", "  .amdhsa_system_sgpr_workgroup_id_x 1",
                ".end_amdhsa_kernel"]
        return "\n".join(out) + "\n"


def gen(**o):
    return Gen(**o).build()


if __name__ == "__main__":
    o = {}
    out = f"cdna_kernels/{KNAME}.s"
    for a in sys.argv[1:]:
        k, val = a.split("=")
        if k == "out":
            out = val
        else:
            o[k] = int(val) if val.lstrip("-").isdigit() else val
    open(out, "w").write(gen(**o))
    print("wrote", out)
```

```python
import sys, struct
from asmlib import Asm

KNAME = "adaLN_cond__sliding_block_cached__geglu_ffn__decode"

WS_MP = 0x1A0000
WS_G = 0x20000
G_Q = 0xA000
G_ML, G_XT, G_GL, G_U, G_O, G_X1, G_AP, G_OPT = 0x0, 0x400, 0x800, 0x1000, 0x1800, 0x2800, 0x4000, 0x8000
G_SIZE = 0xE000
WS_OP = 0x120000
WS_ST = 0x400000
WS_SIZE = 0x800000
SM, W0, VL = 0x0, 0x5000, 0x15000
RED1, RED_GU, QL, PL, FL, RL = SM, SM + 0x1000, SM + 0x1800, SM + 0x1C00, SM + 0x2C00, SM + 0x3000
F_KDONE, F_CLR, F_J1, F_J2, F_WD, F_GO, F_JF, F_MODE, F_KHALF, MLL, MLG, F_WF, MLW, F_X1, F_ACT, F_GI, F_JA = [FL + o for o in (
    0, 0x10, 0x20, 0x30, 0x50, 0x60, 0x70, 0x74, 0x78, 0x80, 0x100, 0x40, 0x180, 0x14, 0x18, 0x200, 0x7c)]
WDN = W0 + 0x8000
F_DN = F_J1
XM = 0x25000
LDS_SIZE = 0x25800

WS, SC_, SA_, SB_, SX_, SOUT = [f"s[{r}:{r+3}]" for r in range(32, 56, 4)]
DBG = SC_
SRDN = dict(WS=32, SC_=36, DBG=36, SA_=40, SB_=44, SX_=48, SOUT=52)
KARG = dict(x=4, k=6, v=8, wq=10, wo=12, wg=16, wu=18, wd=20, c=22, wmod=24, out=26, dbg=28, ws=30)
sX, sJ, sB, sS, sW, sG, sCNT, sMODE = [f"s{r}" for r in range(72, 80)]
T = [f"s{r}" for r in range(80, 92)] + [f"s{r}" for r in range(56, 72)]
FULL = "s[92:93]"
MA, MB_, MC = "s[94:95]", "s[96:97]", "s[98:99]"
LIM_G = 40000
LIM_L = 400000


def f32(x):
    return "0x%08x" % struct.unpack("<I", struct.pack("<f", x))[0]


LOG2E = 1.4426950408889634


def v(n, c=1):
    return f"v{n}" if c == 1 else f"v[{n}:{n+c-1}]"


class Gen:
    def __init__(self, **o):
        self.o = dict(depth=6, kpre=2, rotmul=9, stamps=0, force_slow=0, wpol="nt", dry=0, noop=0, nog=0, nojan=0,
                      so=0, dm=3, rx=9, rb=8, rs=5, blocked=0, wdepth=6, early=4, vdepth=0, jfgo=32, mdepth=6, qlim=40, pk=1, pgap=3, pke=1, pgape=10, gate=0, vin=1, goat=15, goat3=15, goatc=15,
                      kdb=0, kd3=0, vdb=0, goq=4, bhi=16, blo=4, latew=1, dbgt=0, padto=0, kda=6, vda=6, nw0=3, nw1=6, wl=6, kdj=6, gon=7, go3=7, mhold=1, pre=1, nj=2, jq=2, jm=2, flim=12, xlim=40, qgate=1, jfree=1)
        self.o.update(o)
        self.A = Asm()
        self.deferred = []
        self.nstamp = 0

    def srd(self, name, karg, size):
        A = self.A
        r = SRDN[name]
        k = KARG[karg]
        A(f"s_mov_b32 s{r}, s{k}")
        A(f"s_mov_b32 s{r+1}, s{k+1}")
        A(f"s_mov_b32 s{r+2}, {size:#x}")
        A(f"s_mov_b32 s{r+3}, 0x20000")

    def lane_addr(self, dst, tmp, terms, lane=1):
        A = self.A
        first = True
        for lsb, width, sh in terms:
            if first:
                A(f"v_bfe_u32 v{dst}, v{lane}, {lsb}, {width}")
                if sh:
                    A(f"v_lshlrev_b32 v{dst}, {sh}, v{dst}")
                first = False
            else:
                A(f"v_bfe_u32 v{tmp}, v{lane}, {lsb}, {width}")
                A(f"v_lshl_add_u32 v{dst}, v{tmp}, {sh}, v{dst}")

    def stamp(self, idx):
        if self.o["stamps"]:
            self.A(f"s_memrealtime s[{4+2*idx}:{5+2*idx}]")

    def stamp_init(self):
        if self.o["stamps"]:
            for i in range(1, 14):
                self.A(f"s_mov_b32 s{4+2*i}, 0")
            self.A("s_mov_b32 s4, s100")

    def stamp_flush(self):
        if not self.o["stamps"]:
            return
        A = self.A
        A("s_memrealtime s[30:31]")
        A("s_mov_b64 exec, 1")
        A("s_waitcnt vmcnt(0) lgkmcnt(0)")
        A(f"s_mul_i32 {T[0]}, s2, 12")
        A(f"s_add_u32 {T[0]}, {T[0]}, s3")
        A(f"s_lshl_b32 {T[0]}, {T[0]}, 6")
        A(f"s_add_u32 {T[0]}, {T[0]}, {WS_ST:#x}")
        A("v_mov_b32 v20, 0")
        for q in range(4):
            for e in range(4):
                i = 4 * q + e
                A(f"v_mov_b32 v{16+e}, " + (f"s{4+2*i}" if i < 14 else "0"))
            A(f"buffer_store_dwordx4 v[16:19], v20, {WS}, {T[0]} offen offset:{16*q}")
        if self.o["dbgt"]:
            A("s_load_dwordx2 s[36:37], s[0:1], 96")
            A("s_mov_b32 s38, 256")
            A("s_mov_b32 s39, 0x20000")
            A(f"s_lshl_b32 {T[0]}, s2, 4")
            A(f"s_add_u32 {T[0]}, {T[0]}, s3")
            A("s_waitcnt lgkmcnt(0)")
            slot = 0
            for wg, wv, sts in [(0, 0, [0, 5]), (32, 0, [2, 3, 5]), (128, 4, [1, 2]), (128, 8, [7]),
                                (128, 0, [6, 7, 8, 9, 10, 11, 13]), (255, 11, [0])]:
                l = A.newlabel("DT")
                A(f"s_cmp_lg_u32 {T[0]}, {wg*16+wv}")
                A(f"s_cbranch_scc1 {l}")
                for i in sts:
                    A(f"v_mov_b32 v16, s{4+2*i}")
                    A(f"buffer_store_dword v16, v20, s[36:39], 0 offen offset:{4*slot} sc1")
                    slot += 1
                A.label(l)
                A("s_nop 0")

    def maxtree(self, regs, dst):
        A = self.A
        regs = list(regs)
        if len(regs) == 1:
            return regs[0]
        if len(regs) == 2:
            A(f"v_max_u32 v{dst}, v{regs[0]}, v{regs[1]}")
            return dst
        A(f"v_max3_u32 v{dst}, v{regs[0]}, v{regs[1]}, v{regs[2]}")
        regs = regs[3:]
        while len(regs) >= 2:
            A(f"v_max3_u32 v{dst}, v{dst}, v{regs[0]}, v{regs[1]}")
            regs = regs[2:]
        if regs:
            A(f"v_max_u32 v{dst}, v{dst}, v{regs[0]}")
        return dst

    def delay(self, n):
        A = self.A
        if n <= 4:
            for _ in range(n):
                A("s_nop 15")
            return
        L = A.newlabel("DL")
        A(f"s_mov_b32 {sCNT}, {n-1}")
        A.label(L)
        A("s_nop 13")
        A(f"s_sub_u32 {sCNT}, {sCNT}, 1")
        A(f"s_cbranch_scc0 {L}")

    def poll(self, loads, regs, tmp, sent="-1", lds=False, restore=FULL, first=None, k=1, gap=0):
        A = self.A
        L, D = A.newlabel("P"), A.newlabel("PD")
        for ld, lim in ([first] if first else []) + [(loads, LIM_L if lds else LIM_G)]:
            L0 = A.newlabel("P")
            for _ in range(k - 1):
                for l in ld:
                    A(l)
                self.delay(gap)
            A(f"s_mov_b32 {sCNT}, {lim}")
            A.label(L0)
            for l in ld:
                A(l)
            A("s_waitcnt lgkmcnt(0)" if lds else f"s_waitcnt vmcnt({(k-1)*len(ld)})")
            m = self.maxtree(regs, tmp)
            A(f"v_cmp_eq_u32 vcc, {sent}, v{m}")
            A(f"s_cbranch_vccz {D}")
            if not lds:
                A("s_mov_b64 exec, vcc")
            A(f"s_sub_u32 {sCNT}, {sCNT}, 1")
            A(f"s_cbranch_scc0 {L0}")
            k = 1
        A.label(D)
        if not lds:
            A(f"s_mov_b64 exec, {restore}")
        else:
            A("s_nop 0")

    def packlsb(self, regs, m):
        A = self.A
        A(f"v_lshlrev_b32 v{m}, 31, v{regs[0]}")
        for r in regs[1:]:
            A(f"v_alignbit_b32 v{m}, v{r}, v{m}, 1")

    def flip_poll(self, fast, slow, regs, tmp, exp, lim, mask=True, onfail=()):
        A = self.A
        D = A.newlabel("FD")
        if not self.o["force_slow"]:
            L0 = A.newlabel("FP")
            A(f"s_mov_b32 {sCNT}, {lim}")
            A.label(L0)
            for l in fast:
                A(l)
            A("s_waitcnt vmcnt(0)")
            self.packlsb(regs, tmp)
            A(f"v_cmp_ne_u32 vcc, v{exp}, v{tmp}")
            A(f"s_cbranch_vccz {D}")
            A("s_mov_b64 exec, vcc")
            A(f"s_sub_u32 {sCNT}, {sCNT}, 1")
            A(f"s_cbranch_scc0 {L0}")
        for l in onfail:
            A(l)
        self.lds_wait(F_JF, 1, 12, 13)
        self.poll(slow, regs, tmp)
        A.label(D)
        A("s_mov_b64 exec, -1")
        for r in regs if mask else ():
            A(f"v_and_b32 v{r}, -2, v{r}")

    def get_mask(self, off, dst, n=16):
        A = self.A
        A(f"v_add_u32 v4, {off}, v9")
        A(f"v_add_u32 v4, {XM:#x}, v4")
        self.poll([f"ds_read_b32 v{dst}, v4"], [dst], 5, lds=True)
        A(f"v_xor_b32 v{dst}, {(0xffffffff << (32-n)) & 0xffffffff:#x}, v{dst}")

    def tpoll(self, loads, regs, tmp):
        self.poll(loads, regs, tmp, k=self.o["pk"], gap=self.o["pgap"])

    def lds_wait(self, addr, n, va, vt):
        A = self.A
        A(f"v_mov_b32 v{va}, {addr:#x}")
        if n == 1:
            self.poll([f"ds_read_b32 v{vt}, v{va}"], [vt], vt + 1, lds=True)
        else:
            self.poll([f"ds_read_b128 {v(vt,4)}, v{va}"], list(range(vt, vt + 4)), vt + 4, lds=True)

    def lds_wait_w(self, base, va, vt):
        A = self.A
        A(f"s_lshl_b32 {T[11]}, {sW}, 2")
        A(f"s_add_u32 {T[11]}, {T[11]}, {base:#x}")
        A(f"v_mov_b32 v{va}, {T[11]}")
        self.poll([f"ds_read_b32 v{vt}, v{va}"], [vt], vt + 1, lds=True)

    def lds_set_w(self, base, va, vt):
        A = self.A
        A(f"s_lshl_b32 {T[11]}, {sW}, 2")
        A(f"s_add_u32 {T[11]}, {T[11]}, {base:#x}")
        A(f"v_mov_b32 v{va}, {T[11]}")
        A(f"v_mov_b32 v{vt}, 1")
        A(f"ds_write_b32 v{va}, v{vt}")

    def pub(self, stores):
        A = self.A
        if self.o["force_slow"]:
            for s in stores:
                A(s + " sc1")
            return
        Ls, Lb = A.newlabel("SLOW"), A.newlabel("BACK")
        A(f"s_cmp_eq_u32 {sMODE}, 1")
        A(f"s_cbranch_scc0 {Ls}")
        for s in stores:
            A(s)
        A.label(Lb)
        A("s_nop 0")
        self.deferred.append((Ls, [s + " sc1" for s in stores], Lb))

    def get_mode(self, va, vt):
        A = self.A
        self.lds_wait(F_MODE, 1, va, vt)
        A(f"v_readfirstlane_b32 {sMODE}, v{vt}")

    def rbf(self, d, s):
        self.A(f"v_cvt_pk_bf16_f32 v{d}, 0, v{s}")

    def selreduce(self, a, out):
        A = self.A
        for p in (0, 2):
            for k in range(4):
                A(f"v_permlane16_swap_b32 v{a[k]+p}, v{a[k]+p+1}")
        A(f"v_add_f32 v{a[0]}, v{a[0]}, v{a[1]+1}")
        A(f"v_add_f32 v{a[0]+2}, v{a[0]+2}, v{a[1]+3}")
        A(f"v_add_f32 v{a[2]}, v{a[2]}, v{a[3]+1}")
        A(f"v_add_f32 v{a[2]+2}, v{a[2]+2}, v{a[3]+3}")
        A(f"v_permlane32_swap_b32 v{a[0]}, v{a[0]+2}")
        A(f"v_permlane32_swap_b32 v{a[2]}, v{a[2]+2}")
        A(f"v_add_f32 v{out}, v{a[0]}, v{a[2]+2}")

    def treduce(self, r, out):
        A = self.A
        A(f"v_permlane32_swap_b32 v{r}, v{r+2}")
        A(f"v_permlane32_swap_b32 v{r+1}, v{r+3}")
        A(f"v_add_f32 v{r}, v{r}, v{r+2}")
        A(f"v_add_f32 v{r+1}, v{r+1}, v{r+3}")
        A(f"v_permlane16_swap_b32 v{r}, v{r+1}")
        A(f"v_add_f32 v{out}, v{r}, v{r+1}")

    def allred(self, op, r, t, rows=True):
        A = self.A
        A(f"{op}_dpp v{r}, v{r}, v{r} row_ror:4 row_mask:0xf bank_mask:0xf")
        A(f"{op}_dpp v{r}, v{r}, v{r} row_ror:8 row_mask:0xf bank_mask:0xf")
        if rows:
            for sw in ("v_permlane32_swap_b32", "v_permlane16_swap_b32"):
                A(f"v_mov_b32 v{t}, v{r}")
                A(f"{sw} v{t}, v{r}")
                A(f"{op} v{r}, v{r}, v{t}")

    def unpack(self, src, dst, n=4):
        A = self.A
        for p in range(n):
            A(f"v_lshlrev_b32 v{dst+2*p}, 16, v{src+p}")
            A(f"v_and_b32 v{dst+2*p+1}, 0xffff0000, v{src+p}")

    def ln(self, X, ONE, D, t, out):
        A = self.A
        for i in range(4):
            A(f"v_mfma_f32_16x16x32_bf16 {v(D,4)}, {v(ONE,4)}, {v(X+4*i,4)}, " + ("0" if i == 0 else v(D, 4)))
        for i in range(16):
            q = t + (i & 1)
            A(f"v_dot2_f32_bf16 v{q}, v{X+i}, v{X+i}, " + ("0" if i < 2 else f"v{q}"))
        self.unpack(X, out)
        A(f"v_add_f32 v{t}, v{t}, v{t+1}")
        self.allred("v_add_f32", D, t + 1, rows=False)
        self.allred("v_add_f32", t, t + 1)
        A(f"v_mul_f32 v{D}, {f32(1/512)}, v{D}")
        self.rbf(t + 2, D)
        A(f"v_mul_f32 v{D+1}, v{D}, v{D}")
        A(f"v_mul_f32 v{t}, {f32(1/512)}, v{t}")
        A(f"v_sub_f32 v{t}, v{t}, v{D+1}")
        A(f"v_max_f32 v{t}, 0, v{t}")
        self.rbf(t, t)
        A(f"v_add_f32 v{t}, {f32(1e-5)}, v{t}")
        self.rbf(t, t)
        A(f"v_sqrt_f32 v{t}, v{t}")
        for p in range(4):
            A(f"v_pk_add_f32 {v(out+2*p,2)}, {v(out+2*p,2)}, {v(t+2,2)} op_sel_hi:[1,0] neg_lo:[0,1] neg_hi:[0,1]")
        self.rbf(t, t)
        A(f"v_rcp_f32 v{t+4}, v{t}")
        for e in range(8):
            self.rbf(out + e, out + e)
        for p in range(4):
            A(f"v_pk_mul_f32 {v(out+2*p,2)}, {v(out+2*p,2)}, {v(t+4,2)} op_sel_hi:[1,0]")
        for e in range(8):
            self.rbf(out + e, out + e)

    def prep_mod(self, SH, SCL, sh_out, c1_out):
        A = self.A
        self.unpack(SCL, c1_out)
        self.unpack(SH, sh_out)
        for e in range(8):
            A(f"v_add_f32 v{c1_out+e}, 1.0, v{c1_out+e}")
        for e in range(8):
            self.rbf(c1_out + e, c1_out + e)

    def combine(self, LNV, C1, SH, out):
        A = self.A
        for p in range(4):
            A(f"v_pk_mul_f32 {v(LNV+2*p,2)}, {v(LNV+2*p,2)}, {v(C1+2*p,2)}")
        for e in range(8):
            self.rbf(LNV + e, LNV + e)
        for p in range(4):
            A(f"v_pk_add_f32 {v(LNV+2*p,2)}, {v(LNV+2*p,2)}, {v(SH+2*p,2)}")
        for p in range(4):
            A(f"v_cvt_pk_bf16_f32 v{out+p}, v{LNV+2*p}, v{LNV+2*p+1}")

    def dma(self, voff, srd, soff, ldsaddr_s, ldsconst):
        A = self.A
        A(f"s_add_u32 m0, {ldsaddr_s}, {ldsconst:#x}")
        pol = self.o["wpol"]
        A(f"buffer_load_dwordx4 v{voff}, {srd}, {soff} offen {pol} lds".replace("  ", " "))


    def mask(self, m, lo, hi=None):
        r = int(m[2:].split(":")[0])
        self.A(f"s_mov_b32 s{r}, {lo:#x}")
        self.A(f"s_mov_b32 s{r+1}, {(lo if hi is None else hi):#x}")

    def pack_dw(self, val, dst, t):
        A = self.A
        A(f"v_mov_b32_dpp v{t}, v{val} quad_perm:[1,0,3,2] row_mask:0xf bank_mask:0xf")
        A(f"v_cvt_pk_bf16_f32 v{dst}, v{val}, v{t}")

    def pack_x4(self, val, dst):
        A = self.A
        self.pack_dw(val, dst, dst + 1)
        for i in (1, 2, 3):
            A(f"v_mov_b32_dpp v{dst+i}, v{dst} row_shl:{2*i} row_mask:0xf bank_mask:0xf")

    def quad_x4(self, d):
        for i in (1, 2, 3):
            self.A(f"v_mov_b32_dpp v{d+i}, v{d} quad_perm:[{i},{i},{i},{i}] row_mask:0xf bank_mask:0xf")

    def silu(self):
        A = self.A
        self.unpack(16, 136)
        for e in range(8):
            A(f"v_mul_f32 v{144+e}, {f32(-LOG2E)}, v{136+e}")
        for e in range(8):
            A(f"v_exp_f32 v{144+e}, v{144+e}")
        for e in range(8):
            A(f"v_add_f32 v{144+e}, 1.0, v{144+e}")
        for e in range(8):
            A(f"v_rcp_f32 v{144+e}, v{144+e}")
        for e in range(8):
            A(f"v_mul_f32 v{136+e}, v{136+e}, v{144+e}")
        for p in range(4):
            A(f"v_cvt_pk_bf16_f32 v{16+p}, v{136+2*p}, v{137+2*p}")

    def qp(self):
        A = self.A
        self.get_mask(1024, 158)
        if self.o["qgate"]:
            self.lds_wait_w(F_KDONE, 4, 12)
        A("v_lshlrev_b32 v4, 4, v1")
        A(f"s_lshl_b32 {T[0]}, {sB}, 11")
        A(f"s_add_u32 {T[0]}, {T[0]}, {sG}")
        for i in (3, 2, 1, 0):
            A(f"s_add_u32 {T[i]}, {T[0]}, {G_Q + 0x2000*(i&1) + 0x6000*(i>>1):#x}")

        def lds(c):
            return [f"buffer_load_dwordx4 {v(16+4*i,4)}, v4, {WS}, {T[2*c+(i>>1)]} offen offset:{1024*(i&1)} sc1"
                    for i in range(4)]
        self.flip_poll(lds(1), lds(0), list(range(16, 32)), 5, 158, self.o["qlim"])
        for p in range(4):
            A(f"v_pk_add_f32 {v(16+2*p,2)}, {v(16+2*p,2)}, {v(24+2*p,2)}")
        for p in range(4):
            A(f"v_cvt_pk_bf16_f32 v{24+p}, v{16+2*p}, v{17+2*p}")
        A(f"ds_write_b64 v6, v[24:25] offset:{QL}")
        A(f"ds_write_b64 v6, v[26:27] offset:{QL+512}")
        self.stamp(4)

    def xt(self):
        A = self.A
        A(f"s_getreg_b32 {T[1]}, hwreg(HW_REG_XCC_ID)")
        A(f"s_and_b32 {T[1]}, {T[1]}, 0xf")
        A(f"s_add_u32 {T[0]}, {sG}, {G_XT:#x}")
        self.lane_addr(4, 5, [(0, 5, 2)])
        self.poll([f"buffer_load_dword v20, v4, {WS}, {T[0]} offen sc1"], [20], 5)
        A(f"v_cmp_ne_u32 vcc, {T[1]}, v20")
        A("s_cmp_eq_u64 vcc, 0")
        A(f"s_cselect_b32 {sMODE}, 1, 0")
        A(f"v_mov_b32 v20, {sMODE}")
        A(f"v_mov_b32 v4, {F_MODE:#x}")
        A("ds_write_b32 v4, v20")

    def mlred(self, rows):
        A = self.A
        A("v_max_f32_dpp v18, v16, v16 row_ror:4 row_mask:0xf bank_mask:0xf")
        A("v_max_f32_dpp v18, v18, v18 row_ror:8 row_mask:0xf bank_mask:0xf")
        if rows:
            A("v_mov_b32 v20, v18")
            A("v_permlane16_swap_b32 v20, v18")
            A("v_max_f32 v18, v18, v20")
        A("v_sub_f32 v16, v16, v18")
        A(f"v_mul_f32 v16, {f32(LOG2E)}, v16")
        A("v_exp_f32 v16, v16")
        A("v_mul_f32 v19, v16, v17")
        A("v_add_f32_dpp v19, v19, v19 row_ror:4 row_mask:0xf bank_mask:0xf")
        A("v_add_f32_dpp v19, v19, v19 row_ror:8 row_mask:0xf bank_mask:0xf")
        if rows:
            A("v_mov_b32 v20, v19")
            A("v_permlane16_swap_b32 v20, v19")
            A("v_add_f32 v19, v19, v20")

    def mlx(self):
        A = self.A
        self.get_mode(4, 12)
        self.lane_addr(4, 5, [(0, 4, 3)])
        self.lane_addr(12, 5, [(0, 5, 3)])
        A(f"v_mov_b32 v5, {F_CLR:#x}")
        A(f"s_lshl_b32 {T[0]}, {sB}, 8")
        A(f"s_add_u32 {T[0]}, {T[0]}, {sG}")
        A(f"s_add_u32 {T[0]}, {T[0]}, {G_ML:#x}")
        A(f"s_lshl_b32 {T[1]}, {sS}, 5")
        A(f"s_add_u32 {T[1]}, {T[1]}, {T[0]}")
        self.poll([f"ds_read_b64 v[16:17], v4 offset:{MLL}", "ds_read_b32 v18, v5"], [16, 17, 18], 19, lds=True)
        self.stamp(5)
        self.mlred(False)
        A("v_min_u32 v16, 0xfffffffe, v16")
        A("s_mov_b64 exec, 0xffff")
        A(f"ds_write_b32 v9, v16 offset:{MLG}")
        A("s_mov_b64 exec, 15")
        self.pub([f"buffer_store_dwordx2 v[18:19], v4, {WS}, {T[1]} offen"])
        A("s_mov_b64 exec, -1")
        A(f"s_cmp_lt_u32 {sJ}, 16")
        A("s_cbranch_scc1 L_fin")
        self.poll([f"buffer_load_dwordx2 v[16:17], v12, {WS}, {T[0]} offen sc1"], [16, 17], 5)
        self.mlred(True)
        A("v_rcp_f32 v19, v19")
        A("v_mul_f32 v16, v16, v19")
        A("v_min_u32 v16, 0xfffffffe, v16")
        A("s_mov_b32 exec_hi, 0")
        A(f"ds_write_b32 v9, v16 offset:{MLW}")
        A("s_mov_b64 exec, -1")
        self.stamp(6)

    def get_scl(self, S):
        A = self.A
        self.lane_addr(4, 5, [(0, 1, 3)])
        self.poll([f"ds_read_b64 {v(S+2*i,2)}, v4 offset:{MLG+16*i}" for i in range(4)], list(range(S, S + 8)), 5,
                  lds=True)

    def op_addr(self, t):
        A = self.A
        A(f"s_lshl_b32 {t}, {sX}, 5")
        A(f"s_lshl_b32 {T[11]}, {sB}, 3")
        A(f"s_add_u32 {t}, {t}, {T[11]}")
        A(f"s_add_u32 {t}, {t}, {sS}")
        A(f"s_lshl_b32 {t}, {t}, 2")
        A(f"s_add_u32 {t}, {t}, {sW}")
        A(f"s_lshl_b32 {t}, {t}, 9")
        A(f"s_add_u32 {t}, {t}, {WS_OP:#x}")
        A(f"s_lshl_b32 {T[11]}, {sW}, 9")
        A(f"v_add_u32 v13, {T[11]}, v6")

    def op_pub(self, t, S=24):
        A = self.A
        self.poll([f"ds_read_b64 {v(16+2*i,2)}, v13 offset:{RL+2048*i}" for i in range(4)], list(range(16, 24)), 5,
                  lds=True)
        A(f"v_pk_mul_f32 v[16:17], v[16:17], {v(S,2)}")
        A(f"v_pk_mul_f32 v[20:21], v[20:21], {v(S+4,2)}")
        A(f"v_pk_fma_f32 v[16:17], v[18:19], {v(S+2,2)}, v[16:17]")
        A(f"v_pk_fma_f32 v[20:21], v[22:23], {v(S+6,2)}, v[20:21]")
        A("v_pk_add_f32 v[16:17], v[16:17], v[20:21]")
        self.pub([f"buffer_store_dwordx2 v[16:17], v6, {WS}, {t} offen"])

    def xsum(self, soffs, out):
        A = self.A
        n = len(soffs)
        self.tpoll([f"buffer_load_dwordx4 {v(16+4*i,4)}, v11, {WS}, {soffs[i]} offen sc1" for i in range(n)],
                   list(range(16, 16 + 4 * n)), 5)
        A("v_pk_add_f32 v[32:33], v[16:17], v[20:21]")
        A("v_pk_add_f32 v[34:35], v[18:19], v[22:23]")
        if n == 4:
            A("v_pk_add_f32 v[36:37], v[24:25], v[28:29]")
            A("v_pk_add_f32 v[38:39], v[26:27], v[30:31]")
            A("v_pk_add_f32 v[32:33], v[32:33], v[36:37]")
            A("v_pk_add_f32 v[34:35], v[34:35], v[38:39]")
        self.treduce(32, out)

    def dry_begin(self, name):
        A = self.A
        if self.o["dry"]:
            A(f"s_mov_b64 {FULL}, 0")
            A("s_mov_b64 exec, 0")
            A(f"s_branch {name}_body")
        A.label(f"{name}_real")

    def dry_end(self, name):
        A = self.A
        A.label(f"{name}_end")
        if self.o["dry"]:
            A("s_cmp_lg_u32 s92, 0")
            A("s_cbranch_scc1 L_fin")
            A(f"s_mov_b64 {FULL}, -1")
            A("s_mov_b64 exec, -1")
            A(f"s_branch {name}_real")
        else:
            A("s_branch L_fin")

    def chain(self):
        A = self.A
        A.label("L_chain")
        if self.o["so"] == 1:
            A("s_barrier")
            A("s_branch L_end")
            return
        A("s_setprio 2")
        self.lane_addr(2, 4, [(0, 2, 10), (2, 2, 6), (4, 2, 4)])
        self.lane_addr(3, 4, [(2, 2, 8), (5, 1, 7), (0, 2, 5), (4, 1, 4)])
        A("v_lshlrev_b32 v6, 3, v1")
        A("v_lshlrev_b32 v8, 1, v1")
        A("v_lshlrev_b32 v9, 2, v1")
        self.lane_addr(11, 4, [(0, 3, 4)])
        self.lane_addr(5, 4, [(4, 1, 5)])
        A("v_xor_b32 v11, v11, v5")
        A("v_lshrrev_b32 v10, 3, v1")
        self.lane_addr(7, 4, [(4, 2, 10), (2, 2, 7), (0, 2, 3), (3, 2, 5)])
        self.early()
        self.chainB()
        self.chainA()

    def late_srds(self):
        self.srd("WS", "ws", WS_SIZE)
        self.srd("SOUT", "out", 4096)
        self.gu_srd()
        self.stamp_init()

    def ln_r(self, X, XE, t):
        A = self.A
        for i in range(16):
            A(f"v_dot2_f32_bf16 v{t+(i&1)}, v{X+i}, v160, " + ("0" if i < 2 else f"v{t+(i&1)}"))
            A(f"v_dot2_f32_bf16 v{t+2+(i&1)}, v{X+i}, v{X+i}, " + ("0" if i < 2 else f"v{t+2+(i&1)}"))
        A(f"v_lshlrev_b32 v{XE}, 16, v{XE}")
        A(f"v_add_f32 v{t}, v{t}, v{t+1}")
        A(f"v_add_f32 v{t+2}, v{t+2}, v{t+3}")
        for r in (1, 2, 4, 8):
            for q in (t, t + 2):
                A(f"v_add_f32_dpp v{q}, v{q}, v{q} row_ror:{r} row_mask:0xf bank_mask:0xf")
        A(f"v_mul_f32 v{t}, {f32(1/512)}, v{t}")
        self.rbf(t + 1, t)
        A(f"v_mul_f32 v{t}, v{t}, v{t}")
        A(f"v_mul_f32 v{t+2}, {f32(1/512)}, v{t+2}")
        A(f"v_sub_f32 v{t}, v{t+2}, v{t}")
        A(f"v_max_f32 v{t}, 0, v{t}")
        self.rbf(t, t)
        A(f"v_add_f32 v{t}, {f32(1e-5)}, v{t}")
        self.rbf(t, t)
        A(f"v_sqrt_f32 v{t}, v{t}")
        A(f"v_sub_f32 v{XE}, v{XE}, v{t+1}")
        self.rbf(t, t)
        A(f"v_rcp_f32 v{t}, v{t}")
        self.rbf(XE, XE)
        A(f"v_mul_f32 v{XE}, v{XE}, v{t}")
        self.rbf(XE, XE)

    def early(self):
        A = self.A
        WD = self.o["wdepth"]
        A(f"s_lshl_b32 {T[8]}, {sW}, 10")
        A(f"s_lshl_b32 {T[9]}, {sW}, 14")
        A(f"s_lshl_b32 {T[10]}, {sW}, 7")
        A(f"s_cmp_lt_u32 {sJ}, 4")
        A("s_cbranch_scc1 E_jan")
        A(f"s_sub_u32 {T[0]}, {sJ}, 8")
        A(f"s_cmp_lt_u32 {T[0]}, 16")
        A("s_cbranch_scc1 E_q")
        A(f"s_cmp_lt_u32 {sJ}, 8")
        A("s_cbranch_scc1 E_mc")
        A(f"s_lshl_b32 {T[0]}, {sX}, 2")
        A(f"s_add_u32 {T[0]}, {T[0]}, {sB}")
        A(f"s_add_u32 {T[0]}, {T[0]}, 16")
        A(f"s_and_b32 {T[2]}, {sS}, 1")
        A(f"s_lshl_b32 {T[13]}, {T[0]}, 9")
        A(f"s_add_u32 {T[13]}, {T[13]}, {T[10]}")
        A(f"s_lshl_b32 {T[3]}, {T[2]}, 16")
        A(f"s_add_u32 {T[13]}, {T[13]}, {T[3]}")
        self.lane_addr(14, 4, [(2, 1, 15), (4, 2, 5), (3, 1, 4), (0, 2, 2)])
        A(f"s_mov_b32 {T[14]}, 1")
        A("s_branch E_m")
        A.label("E_mc")
        A(f"s_and_b32 {T[0]}, {sJ}, 1")
        A(f"s_lshl_b32 {T[0]}, {T[0]}, 3")
        A(f"s_add_u32 {T[0]}, {T[0]}, {sX}")
        A(f"s_lshr_b32 {T[2]}, {sB}, 1")
        A(f"s_sub_u32 {T[14]}, {sB}, {sW}")
        A(f"s_and_b32 {T[14]}, {T[14]}, 3")
        A(f"s_lshl_b32 {T[13]}, {T[14]}, 5")
        A(f"s_add_u32 {T[13]}, {T[13]}, {sX}")
        A(f"s_lshl_b32 {T[13]}, {T[13]}, 2")
        A(f"s_add_u32 {T[13]}, {T[13]}, {sW}")
        A(f"s_lshl_b32 {T[13]}, {T[13]}, 8")
        A(f"s_add_u32 {T[14]}, {T[14]}, 2")
        A("v_mov_b32 v14, v9")
        A.label("E_m")
        A(f"s_movk_i32 {T[12]}, 6144")
        A(f"s_lshl_b32 {T[1]}, {T[0]}, 7")
        A(f"s_add_u32 {T[13]}, {T[13]}, {WS_MP:#x}")
        A("s_waitcnt lgkmcnt(0)")
        self.srd("SA_", "wmod", 512 * 3072 * 2)
        A("s_branch E_t")
        A.label("E_q")
        A(f"s_lshr_b32 {T[2]}, {T[0]}, 3")
        A(f"s_and_b32 {T[0]}, {T[0]}, 7")
        A(f"s_movk_i32 {T[12]}, 8192")
        A(f"s_lshl_b32 {T[1]}, {sX}, 3")
        A(f"s_add_u32 {T[1]}, {T[1]}, {T[0]}")
        A(f"s_lshl_b32 {T[1]}, {T[1]}, 7")
        A(f"s_lshl_b32 {T[13]}, {T[2]}, 5")
        A(f"s_add_u32 {T[13]}, {T[13]}, {T[0]}")
        A(f"s_lshl_b32 {T[13]}, {T[13]}, 2")
        A(f"s_add_u32 {T[13]}, {T[13]}, {sW}")
        A(f"s_lshl_b32 {T[13]}, {T[13]}, 6")
        A(f"s_add_u32 {T[13]}, {T[13]}, {sG}")
        A(f"s_add_u32 {T[13]}, {T[13]}, {G_Q:#x}")
        A(f"s_mov_b32 {T[14]}, 0")
        self.lane_addr(14, 4, [(4, 2, 11), (0, 4, 2)])
        A("s_waitcnt lgkmcnt(0)")
        self.srd("SA_", "wq", 4096 * 512 * 2)
        A.label("E_t")
        A(f"s_lshl_b32 {T[3]}, {T[2]}, 2")
        A(f"s_add_u32 {T[3]}, {T[3]}, {sW}")
        A(f"s_lshl_b32 {T[2]}, {T[12]}, 6")
        A(f"s_mul_i32 {T[2]}, {T[2]}, {T[3]}")
        A(f"s_add_u32 {T[1]}, {T[1]}, {T[2]}")
        A(f"s_lshl_b32 {T[2]}, {T[12]}, 3")
        A(f"v_mul_u32_u24 v10, {T[12]}, v10")
        A("v_add_u32 v10, v10, v11")
        A("v_xor_b32 v11, 64, v10")
        self.srd("SX_", "x", 4096)
        A(f"s_cmp_eq_u32 {T[14]}, 0")
        A("s_cbranch_scc1 E_nx")
        self.srd("SC_", "c", 4096)
        A(f"s_lshl_b32 {T[4]}, {T[3]}, 7")
        A(f"buffer_load_dwordx4 v[16:19], v2, {SC_}, {T[4]} offen")
        A(f"s_cmp_lg_u32 {T[14]}, 2")
        A("s_cbranch_scc1 E_nx")
        A("v_lshlrev_b32 v15, 6, v1")
        for i in range(4):
            A(f"buffer_load_dwordx4 {v(96+4*i,4)}, v15, {SX_}, 0 offen offset:{16*i}")
        self.lane_addr(15, 4, [(4, 2, 10), (0, 4, 1)])
        A(f"s_lshl_b32 {T[4]}, {sX}, 2")
        A(f"s_add_u32 {T[4]}, {T[4]}, {sW}")
        A(f"s_lshl_b32 {T[4]}, {T[4]}, 5")
        A(f"buffer_load_ushort v112, v15, {SX_}, {T[4]} offen")
        A.label("E_nx")
        for i in range(min(WD, 8)):
            self.dma(10 + (i & 1), SA_, T[1], T[9], W0 + i * 1024)
            if i < 7:
                A(f"s_add_u32 {T[1]}, {T[1]}, {T[2]}")
        A("s_barrier")
        self.late_srds()
        assert WD >= 4
        A(f"s_add_u32 {T[15]}, {T[13]}, 0x6000")
        A(f"buffer_load_dword v159, v14, {WS}, {T[15]} offen sc1")
        A(f"s_bfe_u32 {T[5]}, {T[1]}, 0x30007")
        A(f"s_cmp_eq_u32 {T[5]}, 3")
        A(f"s_cselect_b32 {T[5]}, 2, 1")
        A(f"s_cmp_lt_u32 {sJ}, 8")
        A(f"s_cselect_b32 {T[5]}, 2, {T[5]}")
        A(f"v_mov_b32 v158, {T[5]}")
        for i in range(WD, 8):
            A(f"s_waitcnt vmcnt({WD})")
            self.dma(10 + (i & 1), SA_, T[1], T[9], W0 + i * 1024)
            if i < 7:
                A(f"s_add_u32 {T[1]}, {T[1]}, {T[2]}")
        if self.o["gon"] < 8:
            A(f"s_waitcnt vmcnt({self.o['gon']})")
        self.lds_set_w(F_GI, 12, 13)
        A(f"v_subrev_u32 v12, {F_GI-F_GO}, v12")
        if self.o["mhold"] and not self.o["so"]:
            A(f"s_cmp_lt_u32 {sJ}, 8")
            A("s_cbranch_scc1 E_ng")
        A("ds_write_b32 v12, v158")
        A.label("E_ng")
        for r in range(160, 164):
            A(f"v_mov_b32 v{r}, 0x3f803f80")
        A(f"v_add_u32 v164, {T[9]}, v7")
        for c in (1, 2, 3):
            A(f"v_xor_b32 v{164+c}, {c<<5}, v164")
        A(f"s_cmp_eq_u32 {T[14]}, 0")
        A("s_cbranch_scc1 E_pq")
        A("s_waitcnt vmcnt(9)")
        self.silu()
        A(f"s_cmp_lg_u32 {T[14]}, 2")
        A("s_cbranch_scc1 E_pd")
        self.ln_r(96, 112, 152)
        for i in (1, 2, 3):
            A(f"s_add_u32 {T[16+i]}, {T[13]}, {0x8000*i:#x}")
            A(f"s_add_u32 {T[20+i]}, {T[15]}, {0x8000*i:#x}")
        for i in range(4):
            A(f"v_mov_b32 v{116+i}, 2")
        A(f"v_mov_b32 v120, {F_GO:#x}")
        self.get_mask(0, 158, 3)
        A("s_branch E_pd")
        A.label("E_pq")
        self.lane_addr(15, 4, [(2, 1, 9), (5, 1, 8), (0, 2, 6), (4, 1, 5), (3, 1, 4)])
        A(f"s_lshl_b32 {T[16]}, {T[3]}, 10")
        A(f"s_add_u32 {T[16]}, {T[16]}, {WS_MP:#x}")
        A(f"s_add_u32 {T[20]}, {T[16]}, 0x6000")
        A(f"s_mov_b32 {T[17]}, 0x07060302")
        A.label("E_pd")
        for kk in range(2):
            A(f"s_waitcnt vmcnt({5-5*kk})")
            for c in range(4):
                for hf in range(2):
                    A(f"ds_read_b64_tr_b16 {v(64+8*c+4*kk+2*hf,2)}, v{164+c} offset:{W0+kk*4096+hf*512}")
        self.stamp(1)
        A("s_waitcnt lgkmcnt(0)")
        self.lds_set_w(F_WF, 12, 13)
        if self.o["so"] == 2:
            A("s_branch L_fin")
        A(f"s_cmp_lg_u32 {T[14]}, 0")
        A("s_cbranch_scc1 E_mm")
        A(f"s_lshl_b32 {T[0]}, {sW}, 8")
        self.get_mask(T[0], 158, 4)
        self.stamp(2)
        self.flip_poll(*[[f"buffer_load_dwordx4 v[20:23], v15, {WS}, {T[t]} offen sc1"] for t in (20, 16)],
                       list(range(20, 24)), 5, 158, self.o["flim"], mask=False)
        self.stamp(3)
        A(f"v_perm_b32 v16, v21, v20, {T[17]}")
        A(f"v_perm_b32 v17, v23, v22, {T[17]}")
        A("v_mov_b32_dpp v18, v16 row_ror:8 row_mask:0xf bank_mask:0xf")
        A("v_mov_b32_dpp v19, v17 row_ror:8 row_mask:0xf bank_mask:0xf")
        A.label("E_mm")
        for c in range(4):
            for kk in range(2):
                A(f"v_mfma_f32_16x16x32_bf16 {v(32+8*c+4*kk,4)}, v[16:19], {v(64+8*c+4*kk,4)}, 0")
        A(f"v_add_u32 v4, {T[8]}, v9")
        A(f"s_lshl_b32 {T[0]}, {sW}, 8")
        A(f"v_add_u32 v15, {T[0]}, v9")
        A("v_not_b32 v159, v159")
        for c in range(4):
            a = 32 + 8 * c
            for p in (0, 2):
                for k in range(2):
                    A(f"v_permlane16_swap_b32 v{a+4*k+p}, v{a+4*k+p+1}")
            A(f"v_add_f32 v{a}, v{a}, v{a+5}")
            A(f"v_add_f32 v{a+2}, v{a+2}, v{a+7}")
            A(f"v_permlane32_swap_b32 v{a}, v{a+2}")
            A(f"ds_write_b32 v4, v{a} offset:{RED1+256*c}")
        self.poll([f"ds_read_b32 v{24+i}, v15 offset:{RED1+1024*i}" for i in range(4)], list(range(24, 28)), 29, lds=True)
        A("v_add_f32 v24, v24, v25")
        A("v_add_f32 v26, v26, v27")
        A("v_add_f32 v28, v24, v26")
        self.mask(MB_, 0x11111111)
        A(f"s_cmp_eq_u32 {T[14]}, 1")
        A("s_cbranch_scc1 E_slow")
        A(f"s_cmp_eq_u32 {T[14]}, 2")
        A("s_cbranch_scc1 E_comb")
        A("v_bfi_b32 v28, 1, v159, v28")
        self.quad_x4(28)
        A(f"s_mov_b64 exec, {MB_}")
        A(f"buffer_store_dwordx4 v[28:31], v14, {WS}, {T[15]} offen")
        A("s_branch E_slow")
        A.label("E_comb")
        self.stamp(2)
        go = ["ds_write_b128 v120, v[116:119]"] if self.o["mhold"] else []
        self.flip_poll(*[[f"buffer_load_dword v{20+i}, v14, {WS}, {T[t+i]} offen sc1" for i in (1, 2, 3)] for t in (20, 16)],
                       [21, 22, 23], 5, 158, self.o["xlim"], onfail=go)
        self.stamp(3)
        A("v_add_f32 v28, v28, v22")
        A("v_add_f32 v21, v21, v23")
        A(f"s_bitcmp1_b32 {sJ}, 0")
        A("s_cbranch_scc0 E_nsw")
        A("v_swap_b32 v28, v21")
        A.label("E_nsw")
        self.rbf(21, 21)
        self.rbf(28, 28)
        A("v_add_f32 v21, 1.0, v21")
        self.rbf(21, 21)
        A("v_mul_f32 v21, v21, v112")
        self.rbf(21, 21)
        A("v_add_f32 v28, v28, v21")
        self.rbf(28, 28)
        A("v_bfi_b32 v28, 1, v159, v28")
        self.quad_x4(28)
        A(f"s_mov_b64 exec, {MB_}")
        A(f"buffer_store_dwordx4 v[28:31], v14, {WS}, {T[15]} offen sc1")
        for l in go:
            A(l)
        A.label("E_slow")
        A("s_mov_b64 exec, -1")
        self.stamp(5)
        self.quad_x4(28)
        self.lds_wait(F_JF, 1, 4, 12)
        A(f"s_mov_b64 exec, {MB_}")
        A(f"buffer_store_dwordx4 v[28:31], v14, {WS}, {T[13]} offen sc1")
        A("s_mov_b64 exec, -1")
        A("s_branch E_done")
        A.label("E_jan")
        A("v_lshlrev_b32 v4, 4, v1")
        for r in range(16, 20):
            A(f"v_mov_b32 v{r}, -1")
        self.jan_addr(0)
        A("s_waitcnt lgkmcnt(0)")
        self.srd("WS", "ws", WS_SIZE)
        A(f"s_cmp_ge_u32 {sJ}, {0 if self.o['nojan'] else self.o['nj']}")
        A("s_cbranch_scc1 E_noj")
        self.jan_stores(16, 4)
        A.label("E_noj")
        A("s_barrier")
        self.srd("SX_", "x", 4096)
        self.late_srds()
        self.lds_set_w(F_WF, 12, 13)
        for r in range(160, 164):
            A(f"v_mov_b32 v{r}, 0x3f803f80")
        A("s_waitcnt vmcnt(0)")
        self.lds_set_w(F_J1, 12, 13)
        A(f"v_add_u32 v12, {F_GO-F_J1}, v12")
        A("v_mov_b32 v13, 3")
        A("ds_write_b32 v12, v13")
        self.stamp(1)
        if self.o["so"] == 2:
            A("s_branch L_fin")
        A.label("E_done")
        A(f"s_cmp_ge_u32 {sJ}, 16")
        A("s_cbranch_scc1 L_chainA")

    def jan_addr(self, half):
        A = self.A
        n = -(-56 // (8 * self.o["nj"]))
        A(f"s_lshl_b32 {T[3]}, {sJ}, 3")
        A(f"s_add_u32 {T[3]}, {T[3]}, {sW}")
        A(f"s_mul_i32 {T[3]}, {T[3]}, {1024*n}")
        A(f"s_add_u32 {T[3]}, {T[3]}, {sG}")
        if half:
            A(f"s_add_u32 {T[3]}, {T[3]}, {4096*n}")

    def jan_stores(self, d, va):
        A = self.A
        n = -(-56 // (8 * self.o["nj"]))
        for i in range(n):
            if i and i & 3 == 0:
                A(f"s_add_u32 {T[3]}, {T[3]}, 4096")
            A(f"buffer_store_dwordx4 {v(d,4)}, v{va}, {WS}, {T[3]} offen offset:{1024*(i&3)} sc1")

    def fin_mod(self):
        A = self.A
        for e in range(8):
            self.rbf(144 + e, 144 + e)
        for e in range(8):
            A(f"v_add_f32 v{144+e}, 1.0, v{144+e}")
        for e in range(8):
            self.rbf(144 + e, 144 + e)
        for e in range(8):
            self.rbf(136 + e, 136 + e)

    def chainB(self):
        A = self.A
        A.label("B_post")
        A(f"s_cmp_lg_u32 {sW}, 3")
        A("s_cbranch_scc1 B_noq")
        self.qp()
        A.label("B_noq")
        self.lds_wait(F_JF, 1, 4, 12)
        self.lds_wait_w(F_KDONE, 4, 12)
        A(f"s_cmp_lg_u32 {sW}, 2")
        A("s_cbranch_scc1 B_nox2")
        self.xt()
        A.label("B_nox2")
        for i in range(8):
            A(f"s_add_u32 {T[16+i]}, {T[8]}, {WS_MP + 96*128 + (i>>2)*0x1000 + (i&3)*0x8000:#x}")
        self.get_mode(4, 12)
        self.stamp(6)
        self.lane_addr(10, 4, [(4, 2, 3), (2, 2, 0)])
        A("v_mul_u32_u24 v10, 0xe00, v10")
        self.lane_addr(11, 4, [(0, 2, 4)])
        self.lane_addr(5, 4, [(4, 1, 5)])
        A("v_xor_b32 v11, v11, v5")
        A("v_add_u32 v10, v10, v11")
        self.lane_addr(7, 4, [(2, 4, 6), (4, 1, 5), (0, 2, 3)])
        A(f"v_add_u32 v7, {T[9]}, v7")
        A("v_xor_b32 v11, 32, v7")
        A(f"s_mul_i32 {T[1]}, {sW}, {128*3584}")
        A(f"s_mul_i32 {T[2]}, {sX}, 448")
        A(f"s_add_u32 {T[1]}, {T[1]}, {T[2]}")
        A(f"s_lshr_b32 {T[3]}, {sJ}, 1")
        A(f"s_lshl_b32 {T[2]}, {T[3]}, 6")
        A(f"s_add_u32 {T[12]}, {T[1]}, {T[2]}")
        A(f"s_lshl_b32 {T[13]}, {T[3]}, 8")
        A(f"s_and_b32 {T[14]}, {sJ}, 1")
        A(f"s_lshl_b32 {T[2]}, {T[14]}, 11")
        A(f"s_add_u32 {T[13]}, {T[13]}, {T[2]}")
        A(f"s_add_u32 {T[13]}, {T[13]}, {sG}")
        A(f"s_add_u32 {T[13]}, {T[13]}, {G_GL:#x}")
        for i in range(4):
            A(f"s_xor_b32 {T[4+i]}, {T[8]}, {1024*i}")
            A(f"s_add_u32 {T[4+i]}, {T[4+i]}, {sG}")
            A(f"s_add_u32 {T[4+i]}, {T[4+i]}, {G_X1:#x}")
        A(f"s_lshl_b32 {T[10]}, {sW}, 9")
        A(f"v_add_u32 v9, {T[10]}, v6")
        self.mask(MA, 0x55555555)
        self.op_addr(T[15])
        self.dry_begin("TB")
        self.get_scl(24)
        self.stamp(12)
        self.op_pub(T[15])
        self.stamp(7)
        A(f"s_cmp_ge_u32 {sJ}, 14")
        A("s_cbranch_scc1 L_fin")
        for kk in range(4):
            for hf in range(2):
                A(f"s_add_u32 {T[1]}, {T[12]}, {(32*kk+4*hf)*3584:#x}")
                self.dma(10, SB_, T[1], T[9], W0 + (2 * kk + hf) * 1024)
        self.poll([f"buffer_load_dwordx4 {v(16+4*i,4)}, v3, {WS}, {T[16+i]} offen sc1" for i in range(8)],
                  list(range(16, 48)), 5)
        for p in range(4):
            A(f"v_pk_add_f32 {v(144+2*p,2)}, {v(32+2*p,2)}, {v(40+2*p,2)}")
        for p in range(4):
            A(f"v_pk_add_f32 {v(136+2*p,2)}, {v(16+2*p,2)}, {v(24+2*p,2)}")
        self.fin_mod()
        for c in range(2):
            for kk in range(4):
                for hf in range(2):
                    A(f"ds_read_b64_tr_b16 {v(64+16*c+4*kk+2*hf,2)}, v{11 if c else 7} offset:{W0+(2*kk+hf)*1024}")
            A("s_waitcnt lgkmcnt(0)")
        self.stamp(8)
        A.label("TB_body")
        if self.o["gate"]:
            A(f"s_lshl_b32 {T[0]}, {sJ}, 8")
            A(f"s_add_u32 {T[0]}, {T[0]}, {sG}")
            A(f"s_add_u32 {T[0]}, {T[0]}, {G_AP:#x}")
            A("v_lshlrev_b32 v4, 13, v1")
            A(f"s_and_b64 exec, {FULL}, 3")
            self.poll([f"buffer_load_dword v16, v4, {WS}, {T[0]} offen sc1"], [16], 5)
        self.tpoll([f"buffer_load_dwordx4 {v(16+4*i,4)}, v3, {WS}, {T[4+i]} offen sc1" for i in range(4)],
                   list(range(16, 32)), 5)
        self.stamp(9)
        self.ln(16, 160, 32, 152, 128)
        A("s_waitcnt vmcnt(0)")
        self.combine(128, 144, 136, 16)
        for c in range(2):
            for kk in range(4):
                A(f"v_mfma_f32_16x16x32_bf16 {v(32+16*c+4*kk,4)}, v[16:19], {v(64+16*c+4*kk,4)}, 0")
        self.selreduce([32, 36, 40, 44], 24)
        self.selreduce([48, 52, 56, 60], 25)
        A(f"s_cmp_eq_u32 {sW}, 0")
        A("s_cbranch_scc1 B_g0")
        A(f"ds_write_b64 v9, v[24:25] offset:{RED_GU}")
        A("s_branch TB_end")
        A.label("B_g0")
        self.stamp(10)
        self.poll([f"ds_read_b64 {v(24+2*i,2)}, v6 offset:{RED_GU+512*i}" for i in (1, 2, 3)], list(range(26, 32)), 5,
                  lds=True)
        A("v_pk_add_f32 v[24:25], v[24:25], v[26:27]")
        A("v_pk_add_f32 v[28:29], v[28:29], v[30:31]")
        A("v_pk_add_f32 v[24:25], v[24:25], v[28:29]")
        A(f"s_cmp_lg_u32 {T[14]}, 0")
        A("s_cbranch_scc1 B_up")
        k0 = 0.7978845608028654
        for r in (24, 25):
            self.rbf(r, r)
        for r in (24, 25):
            A(f"v_mul_f32 v{r+2}, v{r}, v{r}")
        for r in (24, 25):
            A(f"v_mul_f32 v{r+2}, {f32(-2*k0*0.044715*LOG2E)}, v{r+2}")
        for r in (24, 25):
            A(f"v_add_f32 v{r+2}, {f32(-2*k0*LOG2E)}, v{r+2}")
        for r in (24, 25):
            A(f"v_mul_f32 v{r+2}, v{r+2}, v{r}")
        for r in (24, 25):
            A(f"v_exp_f32 v{r+2}, v{r+2}")
        for r in (24, 25):
            A(f"v_add_f32 v{r+2}, 1.0, v{r+2}")
        for r in (24, 25):
            A(f"v_rcp_f32 v{r+2}, v{r+2}")
        for r in (24, 25):
            A(f"v_mul_f32 v{r}, v{r}, v{r+2}")
        A.label("B_up")
        A("v_mov_b32_dpp v26, v24 quad_perm:[1,0,3,2] row_mask:0xf bank_mask:0xf")
        A("v_mov_b32_dpp v27, v25 quad_perm:[1,0,3,2] row_mask:0xf bank_mask:0xf")
        A("v_cvt_pk_bf16_f32 v24, v24, v26")
        A("v_cvt_pk_bf16_f32 v25, v25, v27")
        A(f"s_and_b64 exec, {FULL}, {MA}")
        self.pub([f"buffer_store_dword v24, v8, {WS}, {T[13]} offen",
                  f"buffer_store_dword v25, v8, {WS}, {T[13]} offen offset:128"])
        self.stamp(11)
        self.dry_end("TB")

    def gu_srd(self):
        A = self.A
        l1, l2 = A.newlabel("GU"), A.newlabel("GU")
        A(f"s_bitcmp1_b32 {sJ}, 0")
        A(f"s_cbranch_scc1 {l1}")
        self.srd("SB_", "wg", 512 * 1792 * 2)
        A(f"s_branch {l2}")
        A.label(l1)
        self.srd("SB_", "wu", 512 * 1792 * 2)
        A.label(l2)
        A("s_nop 0")

    def chainA(self):
        A = self.A
        A.label("L_chainA")
        A(f"s_sub_u32 {T[10]}, {sJ}, 16")
        A(f"s_lshr_b32 {T[12]}, {T[10]}, 3")
        A(f"s_and_b32 {T[13]}, {T[10]}, 7")
        A(f"s_and_b32 {T[0]}, {sW}, 1")
        A(f"s_lshl_b32 {T[4]}, {T[10]}, 1")
        A(f"s_add_u32 {T[4]}, {T[4]}, {T[0]}")
        A(f"s_lshl_b32 {T[5]}, {T[4]}, 7")
        A(f"s_lshl_b32 {T[6]}, {T[4]}, 8")
        A(f"s_lshl_b32 {T[7]}, {T[4]}, 5")
        for i in range(4):
            A(f"s_add_u32 {T[16+i]}, {T[6]}, {WS_G+G_AP+(i&1)*0x80000+(i>>1)*0x2000:#x}")
        for i in range(2):
            A(f"s_add_u32 {T[20+i]}, {T[6]}, {WS_G+G_OPT+i*0x80000:#x}")
        A(f"s_add_u32 {T[22]}, {sG}, {T[5]}")
        A(f"s_add_u32 {T[22]}, {T[22]}, {G_X1:#x}")
        A(f"s_add_u32 {T[23]}, {sG}, {T[6]}")
        A(f"s_add_u32 {T[23]}, {T[23]}, {G_OPT:#x}")
        A(f"s_lshl_b32 {T[24]}, {T[13]}, 2")
        A(f"s_add_u32 {T[24]}, {T[24]}, {sW}")
        A(f"s_lshl_b32 {T[24]}, {T[24]}, 8")
        A(f"s_lshl_b32 {T[3]}, {T[12]}, 13")
        A(f"s_add_u32 {T[24]}, {T[24]}, {T[3]}")
        A(f"s_add_u32 {T[24]}, {T[24]}, {sG}")
        A(f"s_add_u32 {T[24]}, {T[24]}, {G_AP:#x}")
        A(f"s_lshl_b32 {T[25]}, {T[12]}, 9")
        A(f"s_add_u32 {T[25]}, {T[25]}, {sG}")
        A(f"s_add_u32 {T[25]}, {T[25]}, {G_O:#x}")
        A(f"s_add_u32 {T[26]}, {sG}, {G_GL:#x}")
        self.lane_addr(131, 4, [(2, 2, 10), (0, 2, 3), (4, 2, 1)])
        self.lane_addr(132, 4, [(0, 4, 3), (4, 2, 1)])
        self.lane_addr(11, 4, [(4, 2, 17), (0, 4, 4)])
        self.lane_addr(133, 4, [(4, 2, 4), (0, 3, 1)])
        A("v_bfe_u32 v4, v1, 2, 2")
        A("v_min_u32 v4, 2, v4")
        self.lane_addr(134, 5, [(5, 1, 7), (0, 2, 5), (4, 1, 4)])
        A("v_lshl_add_u32 v134, v4, 8, v134")
        A(f"s_lshl_b32 {T[1]}, {sW}, 5")
        A(f"v_xor_b32 v7, {T[1]}, v7")
        A(f"v_add_u32 v7, {VL:#x}, v7")
        self.lane_addr(15, 4, [(2, 4, 6), (4, 1, 5), (0, 2, 3)])
        A(f"s_lshl_b32 {T[1]}, {T[0]}, 5")
        A(f"v_xor_b32 v15, {T[1]}, v15")
        A(f"v_add_u32 v160, {VL+0x2000:#x}, v15")
        A(f"s_cmp_lg_u32 {sW}, 3")
        A("s_cbranch_scc1 A_noq")
        self.qp()
        A("s_branch A_now")
        A.label("A_noq")
        self.lds_wait(F_JF, 1, 4, 12)
        self.lds_wait_w(F_KDONE, 4, 12)
        A(f"s_cmp_lg_u32 {sW}, 2")
        A("s_cbranch_scc1 A_g")
        self.xt()
        A("s_branch A_now")
        A.label("A_g")
        A(f"buffer_load_ushort v128, v131, {SX_}, {T[7]} offen")
        self.lane_addr(15, 4, [(0, 1, 15), (2, 2, 5), (1, 1, 4), (4, 2, 2)])
        for i in range(4):
            A(f"s_add_u32 {T[i]}, {T[5]}, {WS_MP + (64+96*(i>>1))*128 + (i&1)*0x10000:#x}")
        self.poll([f"buffer_load_dword v{16+i}, v15, {WS}, {T[i]} offen sc1" for i in range(4)], [16, 17, 18, 19], 5)
        A("v_lshlrev_b32 v128, 16, v128")
        A("v_add_f32 v129, v16, v17")
        A("v_add_f32 v130, v18, v19")
        self.rbf(129, 129)
        self.rbf(130, 130)
        A.label("A_now")
        self.get_mode(4, 12)
        self.lane_addr(10, 4, [(3, 3, 11), (0, 3, 4)])
        self.lane_addr(14, 4, [(3, 3, 4)])
        A(f"s_lshl_b32 {T[0]}, {sX}, 2")
        A(f"s_add_u32 {T[0]}, {T[0]}, {sB}")
        A(f"s_lshl_b32 {T[0]}, {T[0]}, 14")
        A(f"s_sub_u32 {T[9]}, {sS}, 4")
        A(f"s_lshl_b32 {T[1]}, {T[9]}, 9")
        A(f"s_add_u32 {T[0]}, {T[0]}, {T[1]}")
        A(f"s_lshl_b32 {T[1]}, {sW}, 7")
        A(f"s_add_u32 {T[0]}, {T[0]}, {T[1]}")
        A(f"s_add_u32 {T[0]}, {T[0]}, {WS_OP:#x}")
        self.op_addr(T[15])
        A(f"s_lshl_b32 {T[8]}, {sB}, 10")
        A(f"s_lshl_b32 {T[9]}, {T[9]}, 8")
        A(f"s_add_u32 {T[8]}, {T[8]}, {T[9]}")
        A(f"s_lshl_b32 {T[9]}, {sW}, 6")
        A(f"s_add_u32 {T[8]}, {T[8]}, {T[9]}")
        A(f"s_add_u32 {T[8]}, {T[8]}, {sG}")
        A(f"s_add_u32 {T[8]}, {T[8]}, {G_O:#x}")
        self.mask(MA, 0x00550055)
        self.mask(MB_, 0x11111111)
        self.mask(MC, 0x0000ffff)
        self.dry_begin("TA")
        self.get_scl(24)
        self.stamp(12)
        A.label("TA_body")
        self.op_pub(T[15])
        self.stamp(6)
        self.poll([f"ds_read_b128 v[24:27], v14 offset:{MLW}"], list(range(24, 28)), 5, lds=True)
        self.tpoll([f"buffer_load_dwordx4 v[20:23], v10, {WS}, {T[0]} offen sc1"], list(range(20, 24)), 5)
        self.stamp(7)
        A("v_pk_mul_f32 v[28:29], v[20:21], v[24:25]")
        A("v_pk_mul_f32 v[30:31], v[22:23], v[26:27]")
        self.treduce(28, 24)
        A("v_add_f32_dpp v24, v24, v24 row_ror:8 row_mask:0xf bank_mask:0xf")
        self.pack_dw(24, 24, 25)
        A(f"s_and_b64 exec, {FULL}, {MA}")
        self.pub([f"buffer_store_dword v24, v133, {WS}, {T[8]} offen"])
        A(f"s_mov_b64 exec, {FULL}")
        if self.o["latew"]:
            self.lds_wait(F_WD, 4, 4, 16)
            for o in range(8):
                for hf in range(2):
                    A(f"ds_read_b64_tr_b16 {v(64+4*o+2*hf,2)}, v7 offset:{(o>>1)*0x4000+(o&1)*4096+hf*512}")
                if o == 3:
                    A("s_waitcnt lgkmcnt(0)")
        self.tpoll([f"buffer_load_dwordx4 {v(16+4*t,4)}, v2, {WS}, {T[25]} offen offset:{256*t} sc1" for t in range(2)],
                   list(range(16, 24)), 5)
        self.stamp(8)
        A("s_waitcnt lgkmcnt(0)")
        for t in range(2):
            for kk in range(4):
                A(f"v_mfma_f32_16x16x32_bf16 {v(32+4*kk,4)}, {v(16+4*t,4)}, {v(64+16*t+4*kk,4)}, " +
                  ("0" if t == 0 else v(32 + 4 * kk, 4)))
        self.selreduce([32, 36, 40, 44], 48)
        self.quad_x4(48)
        A(f"s_and_b64 exec, {FULL}, {MB_}")
        A(f"buffer_store_dwordx4 v[48:51], v9, {WS}, {T[24]} offen sc1")
        A(f"s_mov_b64 exec, {FULL}")
        self.stamp(9)
        A(f"s_cmp_ge_u32 {sW}, 2")
        A("s_cbranch_scc1 A_down")
        self.xsum(T[16:20], 40)
        self.stamp(10)
        self.rbf(40, 40)
        A("v_mul_f32 v40, v40, v129")
        self.rbf(40, 40)
        A("v_add_f32 v40, v40, v128")
        A("v_mov_b32 v41, v40")
        self.rbf(135, 40)
        A("v_permlane16_swap_b32 v40, v41")
        A("v_cvt_pk_bf16_f32 v40, v40, v41")
        A(f"s_and_b64 exec, {FULL}, {MC}")
        self.pub([f"buffer_store_dword v40, v132, {WS}, {T[22]} offen"])
        A(f"s_mov_b64 exec, {FULL}")
        if self.o["gate"]:
            A(f"v_mov_b32 v4, {F_X1:#x}")
            A("ds_write_b32 v4, v4")
        A(f"s_cmp_lg_u32 {T[13]}, {sX}")
        A("s_cbranch_scc1 TA_end")
        if self.o["gate"]:
            self.lds_wait(F_ACT, 1, 4, 12)
        self.xsum(T[20:22], 40)
        self.stamp(11)
        self.rbf(40, 40)
        A("v_mul_f32 v40, v40, v130")
        self.rbf(40, 40)
        A("v_add_f32 v40, v40, v135")
        self.rbf(40, 40)
        A(f"buffer_store_short_d16_hi v40, v131, {SOUT}, {T[7]} offen")
        A("s_branch TA_end")
        A.label("A_down")
        if self.o["latew"]:
            self.lds_wait(F_DN, 4, 4, 16)
            for i in range(14):
                A(f"ds_read_b64_tr_b16 {v(96+2*i,2)}, v160 offset:{(i&3)*0x4000+(i>>2)*1024}")
            A("s_waitcnt lgkmcnt(0)")
        if self.o["gate"]:
            self.lds_wait(F_X1, 1, 4, 12)
            A(f"v_mov_b32 v4, {F_ACT:#x}")
        self.tpoll([f"buffer_load_dwordx4 v[16:19], v3, {WS}, {T[26]} offen sc1",
                    f"buffer_load_dwordx4 v[20:23], v134, {WS}, {T[26]} offen offset:1024 sc1",
                    f"buffer_load_dwordx4 v[24:27], v3, {WS}, {T[26]} offen offset:2048 sc1",
                    f"buffer_load_dwordx4 v[28:31], v134, {WS}, {T[26]} offen offset:3072 sc1"], list(range(16, 32)), 5)
        if self.o["gate"]:
            A("ds_write_b32 v4, v4")
        self.stamp(10)
        for t in range(2):
            self.unpack(16 + 4 * t, 136)
            self.unpack(24 + 4 * t, 144)
            for p in range(4):
                A(f"v_pk_mul_f32 {v(136+2*p,2)}, {v(136+2*p,2)}, {v(144+2*p,2)}")
            for p in range(4):
                A(f"v_cvt_pk_bf16_f32 v{152+4*t+p}, v{136+2*p}, v{137+2*p}")
            for kk in range(4 if t == 0 else 3):
                A(f"v_mfma_f32_16x16x32_bf16 {v(32+4*kk,4)}, {v(152+4*t,4)}, {v(96+16*t+4*kk,4)}, " +
                  ("0" if t == 0 else v(32 + 4 * kk, 4)))
        self.selreduce([32, 36, 40, 44], 48)
        self.quad_x4(48)
        A(f"s_and_b64 exec, {FULL}, {MB_}")
        A(f"buffer_store_dwordx4 v[48:51], v9, {WS}, {T[23]} offen sc1")
        self.stamp(11)
        self.dry_end("TA")

    def kv_base(self):
        A = self.A
        A(f"s_lshl_b32 {T[0]}, {sB}, 3")
        A(f"s_add_u32 {T[0]}, {T[0]}, {sX}")
        A(f"s_lshl_b32 {T[0]}, {T[0]}, 22")
        A(f"s_lshl_b32 {T[1]}, {sS}, 17")
        A(f"s_add_u32 {T[0]}, {T[0]}, {T[1]}")
        A(f"s_add_u32 {T[0]}, {T[0]}, 0x300000")
        A(f"s_mul_i32 {T[1]}, {sX}, {self.o['rx']}")
        A(f"s_mul_i32 {T[2]}, {sB}, {self.o['rb']}")
        A(f"s_add_u32 {T[1]}, {T[1]}, {T[2]}")
        A(f"s_mul_i32 {T[2]}, {sS}, {self.o['rs']}")
        A(f"s_add_u32 {T[1]}, {T[1]}, {T[2]}")
        A(f"s_mul_i32 {T[2]}, {sW}, {8 if self.o['blocked'] else 1}")
        A(f"s_add_u32 {T[1]}, {T[1]}, {T[2]}")

    def tile_off(self, tau):
        A = self.A
        A(f"s_add_u32 {T[2]}, {T[1]}, {tau if self.o['blocked'] else 4*tau}")
        A(f"s_and_b32 {T[2]}, {T[2]}, 31")
        A(f"s_lshl_b32 {T[2]}, {T[2]}, 12")
        A(f"s_add_u32 {T[2]}, {T[2]}, {T[0]}")

    def kwave(self):
        A = self.A
        D = self.o["depth"]
        KB = 40
        A.label("L_k")
        self.lane_addr(2, 4, [(1, 1, 10), (2, 2, 8), (0, 1, 6), (4, 2, 4)])
        self.kv_base()
        A("s_waitcnt lgkmcnt(0)")
        self.srd("SA_", "k", 0x8000000)
        self.srd("WS", "ws", WS_SIZE)
        self.stamp_init()
        A("s_barrier")
        variants = [D]
        if self.o["so"] != 1:
            self.lds_wait_w(F_GO, 3, 8)
            A(f"v_readfirstlane_b32 {T[3]}, v8")
            variants = [D, self.o["kd3"] or D, self.o["kdj"]]
        A("s_setprio 3")
        self.stamp(7)
        if self.o["so"] != 1:
            A(f"s_cmp_eq_u32 {T[3]}, 2")
            A("s_cbranch_scc1 K_v1")
            A(f"s_cmp_eq_u32 {T[3]}, 3")
            A("s_cbranch_scc1 K_v2")
        for vi, Dv in enumerate(variants):
            A.label(f"K_v{vi}")
            for i in range(32):
                tau, u = i >> 2, i & 3
                if u == 0:
                    self.tile_off(tau)
                if i >= Dv:
                    A(f"s_waitcnt vmcnt({Dv-1})")
                A(f"buffer_load_dwordx4 {v(KB+4*i,4)}, v2, {SA_}, {T[2]} offen offset:{2048*(u>>1)+128*(u&1)} nt")
                if i == 16:
                    A(f"v_mov_b32 v3, {F_KHALF:#x}")
                    A("ds_write_b32 v3, v3")
            if vi < len(variants) - 1:
                A("s_branch K_vd")
        A.label("K_vd")
        self.lds_set_w(F_KDONE, 3, 4)
        A("s_setprio 0")
        self.stamp(1)
        if self.o["so"]:
            A("s_waitcnt vmcnt(0)")
            A("s_branch L_fin")
            return
        self.lane_addr(5, 4, [(4, 2, 6), (0, 2, 4), (2, 2, 2)])
        A(f"s_lshl_b32 {T[3]}, {sW}, 10")
        A(f"v_add_u32 v5, {T[3]}, v5")
        A(f"s_lshl_b32 {T[3]}, {sW}, 5")
        A("v_lshlrev_b32 v6, 3, v1")
        A(f"v_add_u32 v6, {T[3]}, v6")
        self.lane_addr(3, 4, [(0, 2, 8), (2, 1, 6), (4, 2, 4)])
        self.poll([f"ds_read_b128 {v(8+4*u,4)}, v3 offset:{QL+128*u}" for u in range(2)], list(range(8, 16)), 4, lds=True)
        A("s_setprio 3")
        self.stamp(2)
        dbuf = [16, 20, 32, 36]
        pend = []
        for dl in range(16):
            jj, c = dl >> 2, dl & 3
            if dl % 2 == 0:
                A(f"s_waitcnt vmcnt({28-2*dl})")
            d = dbuf[dl & 3]
            for uu in range(2):
                A(f"v_mfma_f32_16x16x32_bf16 {v(d,4)}, {v(KB+8*dl+4*uu,4)}, {v(8+4*uu,4)}, " + ("0" if uu == 0 else v(d, 4)))
            cur = []
            for rho in range(2):
                own, oth = (d + 2 * rho, d + 2 * rho + 1) if c % 2 == 0 else (d + 2 * rho + 1, d + 2 * rho)
                ror = 12 if c % 2 == 0 else 4
                cur.append(f"v_add_f32_dpp v{24+2*jj+rho}, v{oth}, v{own} row_ror:{ror} row_mask:0xf bank_mask:{1<<c:#x}")
            pend.append(cur)
            if len(pend) > 2:
                for l in pend.pop(0):
                    A(l)
        for cur in pend:
            for l in cur:
                A(l)
        self.stamp(3)
        for e in range(8):
            self.rbf(24 + e, 24 + e)
        for e in range(8):
            A(f"v_mul_f32 v{24+e}, {f32(0.08838834764831845)}, v{24+e}")
        for e in range(8):
            self.rbf(24 + e, 24 + e)
        A("v_max3_f32 v32, v24, v25, v26")
        A("v_max3_f32 v33, v27, v28, v29")
        A("v_max3_f32 v32, v32, v30, v31")
        A("v_max_f32 v32, v32, v33")
        self.allred("v_max_f32", 32, 34)
        for e in range(8):
            A(f"v_sub_f32 v{24+e}, v{24+e}, v32")
        for e in range(8):
            A(f"v_mul_f32 v{24+e}, {f32(LOG2E)}, v{24+e}")
        for e in range(8):
            A(f"v_exp_f32 v{24+e}, v{24+e}")
        for p in range(4):
            A(f"v_cvt_pk_bf16_f32 v{8+p}, v{24+2*p}, v{25+2*p}")
        for p in range(4):
            A(f"v_min_u32 v{8+p}, 0xfffffffe, v{8+p}")
        for jj in range(4):
            A(f"ds_write_b32 v5, v{8+jj} offset:{PL+256*jj}")
        self.stamp(4)
        A("v_add_f32 v33, v24, v25")
        A("v_add_f32 v34, v26, v27")
        A("v_add_f32 v35, v28, v29")
        A("v_add_f32 v36, v30, v31")
        A("v_add_f32 v33, v33, v34")
        A("v_add_f32 v35, v35, v36")
        A("v_add_f32 v33, v33, v35")
        self.allred("v_add_f32", 33, 34)
        A("v_min_u32 v32, 0xfffffffe, v32")
        A("v_min_u32 v33, 0xfffffffe, v33")
        A("s_mov_b64 exec, 15")
        A(f"ds_write_b64 v6, v[32:33] offset:{MLL}")
        A(f"s_cmp_lg_u32 {sW}, 0")
        A("s_cbranch_scc1 L_fin")
        A("s_mov_b64 exec, -1")
        A("s_setprio 1")
        A("v_lshlrev_b32 v9, 2, v1")
        self.mlx()
        A("s_branch L_fin")

    def pmask(self, P, PM):
        return [f"v_mov_b32_dpp v{PM+4*g+i}, v{P+i} quad_perm:[0,1,2,3] row_mask:0xf bank_mask:{1<<g:#x}"
                for g in range(4) for i in range(4)]

    def pv(self, buf, PM, first=False, fill=(), waits=False, ACC=24):
        A = self.A
        fill = list(fill)
        for t in range(8):
            a = ACC + 4 * (t >> 2)
            if waits:
                A(f"s_waitcnt lgkmcnt({7-t})")
            A(f"v_mfma_f32_16x16x32_bf16 {v(a,4)}, {v(PM+4*(t&3),4)}, {v(buf+4*t,4)}, " +
              ("0" if first and t & 3 == 0 else v(a, 4)))
            for l in fill[2 * t:2 * t + 2]:
                A(l)

    def vread(self, buf, off, hfs=(0, 1), TA=64):
        for t in range(8):
            for hf in hfs:
                self.A(f"ds_read_b64_tr_b16 {v(buf+4*t+2*hf,2)}, v{TA+t} offset:{off+4096*hf}")

    def vwave(self):
        A = self.A
        D = self.o["vdepth"] or self.o["depth"]
        VB = 72
        A.label("L_v")
        A("v_lshlrev_b32 v2, 4, v1")
        for r in range(4, 8):
            A(f"v_mov_b32 v{r}, -1")
        A(f"s_mul_i32 {T[3]}, {sW}, 5120")
        A(f"v_add_u32 v3, {T[3]}, v2")
        for i in range(5):
            A(f"ds_write_b128 v3, v[4:7] offset:{SM+1024*i}")
        A(f"s_lshl_b32 {T[3]}, {sW}, 9")
        A(f"s_add_u32 {T[3]}, {T[3]}, {XM:#x}")
        A(f"v_lshl_add_u32 v3, v1, 3, {T[3]}")
        A("ds_write_b64 v3, v[4:5]")
        self.lane_addr(10, 9, [(2, 1, 9), (5, 1, 8), (0, 2, 6), (4, 1, 5), (3, 1, 4)])
        A("v_lshlrev_b32 v11, 2, v1")
        A(f"s_lshr_b32 {T[7]}, {sJ}, 4")
        A(f"s_lshl_b32 {T[7]}, {T[7]}, 2")
        A(f"s_add_u32 {T[7]}, {T[7]}, {sW}")
        A(f"s_lshl_b32 {T[7]}, {T[7]}, 10")
        A(f"s_add_u32 {T[7]}, {T[7]}, {WS_MP+0x6000:#x}")
        A(f"s_lshl_b32 {T[12]}, {sX}, 2")
        A(f"s_add_u32 {T[12]}, {T[12]}, {sB}")
        A(f"s_lshl_b32 {T[12]}, {T[12]}, 8")
        A(f"s_lshl_b32 {T[13]}, {sS}, 2")
        A(f"s_add_u32 {T[13]}, {T[13]}, {sW}")
        A(f"s_lshl_b32 {T[8]}, {sB}, 11")
        A(f"s_add_u32 {T[8]}, {T[8]}, {sG}")
        A(f"s_add_u32 {T[8]}, {T[8]}, {G_Q+0x6000:#x}")
        A(f"s_sub_u32 {T[9]}, {sJ}, 8")
        NJ = self.o["nj"]
        self.jan_addr(1)
        A(f"s_mul_i32 {T[5]}, {sX}, 3072")
        A(f"s_lshl_b32 {T[6]}, {sW}, 15")
        A(f"s_add_u32 {T[5]}, {T[5]}, {T[6]}")
        A(f"s_add_u32 {T[5]}, {T[5]}, {WS_MP:#x}")
        A("s_waitcnt lgkmcnt(0)")
        self.srd("WS", "ws", WS_SIZE)
        self.srd("DBG", "dbg", 256)
        A(f"s_cmp_ge_u32 {sJ}, {0 if self.o['nojan'] else NJ}")
        A("s_cbranch_scc1 V_noj")
        A(f"s_cmp_lg_u32 {sJ}, 0")
        A("s_cbranch_scc1 V_j1")
        for i in range(3):
            A(f"buffer_store_dwordx4 v[4:7], v2, {WS}, {T[5]} offen offset:{1024*i} sc1")
        A.label("V_j1")
        self.jan_stores(4, 2)
        A.label("V_noj")
        A(f"s_cmp_ge_u32 {T[9]}, 16")
        A("s_cbranch_scc1 V_ns")
        A(f"buffer_load_dwordx4 v[72:75], v10, {WS}, {T[7]} offen sc1")
        A.label("V_ns")
        A(f"s_cmp_lg_u32 {T[13]}, 4")
        A("s_cbranch_scc1 V_nx")
        for i in (1, 2, 3):
            A(f"s_add_u32 {T[6]}, {T[12]}, {WS_MP+0x6000+0x8000*i:#x}")
            A(f"buffer_load_dword v{72+i}, v11, {WS}, {T[6]} offen sc1")
        A.label("V_nx")
        A(f"s_cmp_lg_u32 {sW}, 3")
        A("s_cbranch_scc1 V_nq")
        for i in range(4):
            if i == 2:
                A(f"s_add_u32 {T[8]}, {T[8]}, 0x2000")
            A(f"buffer_load_dwordx4 {v(88+4*i,4)}, v2, {WS}, {T[8]} offen offset:{1024*(i&1)} sc1")
        A.label("V_nq")
        if self.o["pre"]:
            A(f"s_cmp_lg_u32 {sW}, 2")
            A("s_cbranch_scc1 V_npre")
            A("s_mov_b64 exec, 1")
            A(f"buffer_load_dword v104, v2, {DBG}, 0 offen offset:128 sc1")
            A("s_mov_b64 exec, -1")
            A.label("V_npre")
        A("s_barrier")
        self.srd("SA_", "v", 0x8000000)
        self.srd("SB_", "wo", 4096 * 512 * 2)
        self.srd("SX_", "wd", 512 * 1792 * 2)
        self.stamp_init()
        A(f"s_cmp_ge_u32 {sJ}, {0 if self.o['so'] == 1 else NJ}")
        A("s_cbranch_scc1 V_noj2")
        A("s_waitcnt vmcnt(0)")
        self.lds_set_w(F_J2, 3, 8)
        A(f"s_cmp_lg_u32 {sW}, 0")
        A("s_cbranch_scc1 V_noj2")
        A(f"v_mov_b32 v3, {F_J1:#x}")
        self.poll(["ds_read_b128 v[8:11], v3", "ds_read_b128 v[12:15], v3 offset:16"], list(range(8, 16)), 16, lds=True)
        self.stamp(8)
        A(f"s_lshl_b32 {T[3]}, s2, 2")
        A("v_mov_b32 v3, 0")
        A("s_mov_b64 exec, 1")
        A(f"buffer_store_dword v8, v3, {DBG}, {T[3]} offen sc1")
        A("s_mov_b64 exec, -1")
        A.label("V_noj2")
        A(f"v_lshlrev_b32 v3, 2, v1")
        A(f"v_add_u32 v3, {XM:#x}, v3")
        A(f"s_cmp_ge_u32 {T[9]}, 16")
        A("s_cbranch_scc1 V_ns2")
        A(f"s_lshl_b32 {T[6]}, {sW}, 8")
        A(f"v_add_u32 v9, {T[6]}, v3")
        A("s_waitcnt vmcnt(0)")
        self.packlsb(list(range(72, 76)), 8)
        A("ds_write_b32 v9, v8")
        A.label("V_ns2")
        A(f"s_cmp_lg_u32 {T[13]}, 4")
        A("s_cbranch_scc1 V_nx2")
        A("s_waitcnt vmcnt(0)")
        self.packlsb([73, 74, 75], 8)
        A("ds_write_b32 v3, v8")
        A.label("V_nx2")
        A(f"s_cmp_lg_u32 {sW}, 3")
        A("s_cbranch_scc1 V_nq2")
        A("s_waitcnt vmcnt(0)")
        self.packlsb(list(range(88, 104)), 8)
        A("ds_write_b32 v3, v8 offset:1024")
        A.label("V_nq2")
        A(f"s_lshl_b32 {T[4]}, {sW}, 10")
        A(f"s_cmp_eq_u32 {sW}, 1")
        A("s_cbranch_scc1 V_clr")
        A(f"s_cmp_lg_u32 {sW}, 0")
        A("s_cbranch_scc1 V_nodbg")
        gate = [F_GI, F_WF, F_KHALF]
        A(f"s_cmp_lt_u32 {sJ}, {self.o['jfgo']}")
        A(f"s_cselect_b32 {T[3]}, {gate[self.o['jq']]:#x}, {F_KHALF:#x}" if False else f"s_movk_i32 {T[3]}, {F_KHALF:#x}")
        A(f"s_cselect_b32 {T[3]}, {gate[self.o['jq']]:#x}, {T[3]}")
        A(f"s_cmp_lt_u32 {sJ}, 8")
        A(f"s_cselect_b32 {T[3]}, {gate[self.o['jm']]:#x}, {T[3]}")
        A(f"s_cmp_lt_u32 {sJ}, {32 if self.o['so'] == 1 else 4}")
        A(f"s_cselect_b32 {T[3]}, {F_KDONE if self.o['jfree'] else F_KHALF:#x}, {T[3]}")
        A(f"v_mov_b32 v3, {T[3]}")
        self.poll([f"ds_read_b32 v8, v3"], [8], 9, lds=True)
        self.stamp(10)
        L, Dn = A.newlabel("P"), A.newlabel("PD")
        A(f"s_mov_b32 {sCNT}, {LIM_G}")
        A(f"s_mov_b64 exec, {(1 << 2*NJ) - 1:#x}")
        if self.o["nojan"] or self.o["so"] == 1:
            A(f"s_branch {Dn}")
        A.label(L)
        A(f"buffer_load_dwordx4 v[8:11], v2, {DBG}, 0 offen sc1")
        A("s_waitcnt vmcnt(0)")
        A("v_min3_u32 v8, v8, v9, v10")
        A("v_min_u32 v8, v8, v11")
        A("v_cmp_eq_u32 vcc, 0, v8")
        A(f"s_cbranch_vccz {Dn}")
        A(f"s_sub_u32 {sCNT}, {sCNT}, 1")
        A(f"s_cbranch_scc0 {L}")
        A.label(Dn)
        A("s_mov_b64 exec, 1")
        A(f"v_mov_b32 v3, {F_JF:#x}")
        A("ds_write_b32 v3, v3")
        self.stamp(9)
        A(f"s_getreg_b32 {T[5]}, hwreg(HW_REG_XCC_ID)")
        A(f"s_and_b32 {T[5]}, {T[5]}, 0xf")
        A(f"s_lshl_b32 {T[3]}, {sJ}, 2")
        A(f"s_add_u32 {T[3]}, {T[3]}, {sG}")
        A(f"s_add_u32 {T[3]}, {T[3]}, {G_XT:#x}")
        A(f"v_mov_b32 v8, {T[5]}")
        A(f"buffer_store_dword v8, v2, {WS}, {T[3]} offen sc1")
        A("s_mov_b64 exec, -1")
        A("s_branch V_nodbg")
        A.label("V_clr")
        A(f"s_lshl_b32 {T[7]}, {sX}, 2")
        A(f"s_add_u32 {T[7]}, {T[7]}, {sB}")
        A(f"s_lshl_b32 {T[7]}, {T[7]}, 3")
        A(f"s_add_u32 {T[7]}, {T[7]}, {sS}")
        A(f"s_lshl_b32 {T[7]}, {T[7]}, 11")
        A(f"s_add_u32 {T[7]}, {T[7]}, {WS_OP:#x}")
        if not self.o["noop"]:
            A(f"buffer_store_dwordx4 v[4:7], v2, {WS}, {T[7]} offen sc1")
            A(f"buffer_store_dwordx4 v[4:7], v2, {WS}, {T[7]} offen offset:1024 sc1")
        A("s_waitcnt vmcnt(0)")
        A(f"v_mov_b32 v3, {F_CLR:#x}")
        A("ds_write_b32 v3, v3")
        A.label("V_nodbg")
        self.stamp(1)
        self.kv_base()
        A(f"s_lshl_b32 {T[10]}, {sW}, 14")
        A(f"s_add_u32 {T[10]}, {T[10]}, {W0:#x}")
        for r in range(32, 64):
            A(f"v_mov_b32 v{r}, 0")
        self.lane_addr(3, 4, [(4, 1, 5)])
        A("v_xor_b32 v4, v2, v3")
        for i in (1, 2, 3):
            A(f"v_xor_b32 v{4+i}, {i<<6}, v4")
        self.lane_addr(64, 3, [(2, 2, 10), (4, 2, 8), (2, 2, 6), (4, 1, 5), (0, 2, 3)])
        A(f"s_add_u32 {T[3]}, {T[10]}, 0x10000")
        A(f"v_add_u32 v64, {T[3]}, v64")
        for t in range(1, 8):
            A(f"v_xor_b32 v{64+t}, {t<<5}, v64")
        if self.o["latew"]:
            A(f"s_sub_u32 {T[3]}, {sJ}, 16")
            A(f"s_lshl_b32 {T[12]}, {sX}, 5")
            A(f"s_lshr_b32 {T[5]}, {T[3]}, 3")
            A(f"s_lshl_b32 {T[5]}, {T[5]}, 2")
            A(f"s_add_u32 {T[12]}, {T[12]}, {T[5]}")
            A(f"s_add_u32 {T[12]}, {T[12]}, {sW}")
            A(f"s_lshl_b32 {T[12]}, {T[12]}, 14")
            A(f"s_and_b32 {T[5]}, {T[3]}, 7")
            A(f"s_lshl_b32 {T[5]}, {T[5]}, 7")
            A(f"s_add_u32 {T[12]}, {T[12]}, {T[5]}")
            A(f"s_mul_i32 {T[13]}, {sX}, {224*1024}")
            A(f"s_lshl_b32 {T[5]}, {T[3]}, 6")
            A(f"s_add_u32 {T[13]}, {T[13]}, {T[5]}")
            A(f"s_lshr_b32 {T[5]}, {sW}, 1")
            A(f"s_lshl_b32 {T[5]}, {T[5]}, 15")
            A(f"s_add_u32 {T[13]}, {T[13]}, {T[5]}")
            A(f"s_and_b32 {T[5]}, {sW}, 1")
            A(f"s_lshl_b32 {T[5]}, {T[5]}, 12")
            A(f"s_add_u32 {T[13]}, {T[13]}, {T[5]}")
            self.lane_addr(24, 3, [(0, 3, 4), (3, 3, 10)])
            self.lane_addr(27, 3, [(4, 1, 5)])
            A("v_xor_b32 v24, v24, v27")
            A("v_xor_b32 v25, 64, v24")
            self.lane_addr(26, 3, [(4, 2, 13), (2, 2, 10), (0, 2, 4)])
            A("v_xor_b32 v26, v26, v27")
        self.lds_wait_w(F_KDONE, 3, 8)
        A("s_setprio 3")
        self.stamp(2)
        if self.o["latew"]:
            A(f"s_cmp_ge_u32 {sJ}, 16")
            A("s_cbranch_scc1 V_vA")
        variants = [D]
        if self.o["latew"]:
            variants.append(self.o["vda"])
        for vi, D in enumerate(variants):
            isA = self.o["latew"] and vi == len(variants) - 1
            A.label("V_vA" if isA else f"V_v{vi}")
            done = 0
            for i in range(32):
                if i == 16 and not self.o["so"]:
                    self.lds_wait(F_WF, 4, 3, 8)
                if i & 3 == 0:
                    self.tile_off(i >> 2)
                    A(f"s_add_u32 m0, {T[10]}, {(0x10000 + 1024*i) if i < 16 else 1024*(i-16):#x}")
                if i >= D:
                    A(f"s_waitcnt vmcnt({D-1})")
                A(f"buffer_load_dwordx4 v{4+(i&3)}, {SA_}, {T[2]} offen offset:{1024*(i&3)} nt lds")
                if self.o["vin"] and not self.o["so"] and i >= D + 3 and (i - D) & 3 == 3:
                    hb = (i - D) >> 2
                    if hb == 4:
                        for t in range(8):
                            A(f"v_subrev_u32 v{64+t}, 0x10000, v{64+t}")
                    if hb < 6:
                        A("s_waitcnt lgkmcnt(0)")
                        self.vread(VB + 32 * (hb >> 1), 8192 * ((hb >> 1) & 1), (hb & 1,))
                        done = hb + 1
            self.stamp(3)
            if self.o["so"]:
                A("s_waitcnt vmcnt(0)")
                A("s_branch L_fin")
                continue
            if isA:
                assert done == 6
                self.vpost(D)
                continue
            for hb in range(done, 6):
                if hb == 4:
                    for t in range(8):
                        A(f"v_subrev_u32 v{64+t}, 0x10000, v{64+t}")
                A(f"s_waitcnt vmcnt({28-4*hb}) lgkmcnt(0)")
                self.vread(VB + 32 * (hb >> 1), 8192 * ((hb >> 1) & 1), (hb & 1,))
            if vi < len(variants) - 1:
                A("s_branch V_vd")
        if self.o["so"]:
            return
        A.label("V_vd")
        self.vpost(0)

    def vpost(self, D):
        A = self.A
        VB = 72
        st = dict(n=0)

        def wo(gate):
            m = st["n"]
            ki, g = m >> 2, m & 3
            A(f"s_add_u32 {T[3]}, {T[12]}, {(128*g+8*ki)*1024:#x}")
            A(f"s_waitcnt vmcnt({gate})")
            self.dma(5 + (g & 1), SB_, T[3], T[10], 0x10000 + m * 1024)
            st["n"] += 1
        if D:
            for i in range(3):
                A(f"v_mov_b32 v{5+i}, v{24+i}")
            while st["n"] < self.o["nw0"]:
                wo(max(D - 1, st["n"]))
        self.lane_addr(3, 4, [(4, 2, 6), (0, 2, 4)])
        A(f"v_add_u32 v3, {T[4]}, v3")
        self.poll([f"ds_read_b128 {v(8+4*b,4)}, v3 offset:{PL+256*b}" for b in range(4)], list(range(8, 24)), 4, lds=True)
        self.stamp(4)
        for l in self.pmask(8, 32):
            A(l)
        self.pv(VB, 32, True, self.pmask(12, 48))
        self.pv(VB + 32, 48, False, self.pmask(16, 32))
        self.pv(VB + 64, 32, False, self.pmask(20, 48))
        self.stamp(5)
        A(f"s_lshl_b32 {T[11]}, {sW}, 11")
        A(f"v_add_u32 v3, {T[11]}, v2")
        A(f"s_waitcnt vmcnt({4+st['n']})")
        self.vread(VB, 8192, (0,))
        while D and st["n"] < self.o["nw1"]:
            wo(max(D - 1, st["n"]))
        A(f"s_waitcnt vmcnt({st['n']})")
        self.stamp(6)
        A("s_waitcnt lgkmcnt(0)")
        self.vread(VB, 8192, (1,))
        self.pv(VB, 48, waits=True)
        A(f"ds_write_b128 v3, v[24:27] offset:{RL}")
        A(f"ds_write_b128 v3, v[28:31] offset:{RL+1024}")
        self.stamp(7)
        if D:
            A("s_setprio 1")
            while st["n"] < 8:
                wo(self.o["wl"] - 1)
            for i in range(4):
                if i == 3:
                    A("s_waitcnt vmcnt(3)")
                    self.lds_set_w(F_WD, 3, 8)
                    A(f"s_cmp_ge_u32 {sW}, 2")
                    A("s_cbranch_scc1 V_dn3")
                else:
                    A(f"s_waitcnt vmcnt({max(self.o['wl']-2-i, 1)})")
                self.dma(7, SX_, T[13], T[10], 0x12000 + i * 1024)
                if i < 3:
                    A(f"s_add_u32 {T[13]}, {T[13]}, {64*1024}")
            A.label("V_dn3")
            A("s_waitcnt vmcnt(0)")
            self.lds_set_w(F_DN, 3, 8)
        A("s_branch L_fin")

    def build(self):
        A = self.A
        if self.o["stamps"] or self.o["padto"]:
            A("s_memrealtime s[100:101]")
        A("s_cmp_ge_u32 s2, 256")
        A("s_cbranch_scc1 L_end")
        A("s_load_dwordx16 s[4:19], s[0:1], 0")
        A("s_load_dwordx8 s[20:27], s[0:1], 64")
        A("s_load_dwordx4 s[28:31], s[0:1], 96")
        A("v_and_b32 v1, 63, v0")
        A("v_lshrrev_b32 v2, 6, v0")
        A("v_readfirstlane_b32 s3, v2")
        A(f"s_and_b32 {sX}, s2, 7")
        A(f"s_lshr_b32 {sJ}, s2, 3")
        A(f"s_and_b32 {sB}, {sJ}, 3")
        A(f"s_lshr_b32 {sS}, {sJ}, 2")
        A(f"s_add_u32 {sG}, {sX}, 1")
        A(f"s_lshl_b32 {sG}, {sG}, 17")
        A(f"s_mov_b64 {FULL}, -1")
        A(f"s_mov_b32 {sMODE}, 0")
        A(f"s_and_b32 {sW}, s3, 3")
        A("s_cmp_ge_u32 s3, 8")
        A("s_cbranch_scc1 L_v")
        A("s_cmp_ge_u32 s3, 4")
        A("s_cbranch_scc1 L_k")
        self.chain()
        self.kwave()
        self.vwave()
        for Ls, stores, Lb in self.deferred:
            A.label(Ls)
            for s in stores:
                A(s)
            A(f"s_branch {Lb}")
        A.label("L_fin")
        if self.o["padto"]:
            A("s_cmp_lg_u32 s2, 0")
            A("s_cbranch_scc1 PAD_e")
            A("s_cmp_lg_u32 s3, 0")
            A("s_cbranch_scc1 PAD_e")
            A(f"s_mov_b32 {T[2]}, 100000")
            A.label("PAD_l")
            A(f"s_memrealtime s[80:81]")
            A("s_waitcnt lgkmcnt(0)")
            A(f"s_sub_u32 {T[2]}, {T[2]}, 1")
            A("s_cbranch_scc1 PAD_e")
            A("s_sub_u32 s80, s80, s100")
            A(f"s_cmp_lt_u32 s80, {self.o['padto']}")
            A("s_cbranch_scc1 PAD_l")
            A.label("PAD_e")
            A("s_nop 0")
        self.stamp_flush()
        A.label("L_end")
        A("s_endpgm")
        body = A.finish()
        ref = open(f"cdna_kernels/{KNAME}.s.ref").read().split("\n")
        head = []
        for l in ref:
            if l.startswith("; @launch"):
                head.append(f"; @launch grid=(256,1,1) block=(768,1,1) lds={LDS_SIZE}")
            elif l.startswith(";"):
                head.append(l)
            else:
                break
        out = head + ['.amdgcn_target "amdgcn-amd-amdhsa--gfx950"', ".text", f".globl {KNAME}_kernel", ".p2align 8",
                      f".type {KNAME}_kernel,@function", f"{KNAME}_kernel:"] + body
        out += ['.section .rodata,"a"', ".p2align 6", f".amdhsa_kernel {KNAME}_kernel",
                "  .amdhsa_next_free_vgpr 168", "  .amdhsa_next_free_sgpr 102", "  .amdhsa_accum_offset 168",
                "  .amdhsa_group_segment_fixed_size 0", "  .amdhsa_kernarg_size 112", "  .amdhsa_user_sgpr_count 2",
                "  .amdhsa_user_sgpr_kernarg_segment_ptr 1", "  .amdhsa_system_sgpr_workgroup_id_x 1",
                ".end_amdhsa_kernel"]
        return "\n".join(out) + "\n"


def gen(**o):
    return Gen(**o).build()


if __name__ == "__main__":
    o = {}
    out = f"cdna_kernels/{KNAME}.s"
    for a in sys.argv[1:]:
        k, val = a.split("=")
        if k == "out":
            out = val
        else:
            o[k] = int(val) if val.lstrip("-").isdigit() else val
    open(out, "w").write(gen(**o))
    print("wrote", out)
```

```python
import sys, struct
from asmlib import Asm

KNAME = "adaLN_cond__sliding_block_cached__geglu_ffn__decode"

WS_MOD = 0x2000
WS_MP = 0x8000
WS_G = 0x10000
G_Q, G_ML, G_O, G_X1, G_GL, G_U, G_XT, G_AP, G_OPT = 0x0, 0x1000, 0x2000, 0x3000, 0x4000, 0x4800, 0x1400, 0x6000, 0xA000
G_QL = 0x5000
G_SIZE = 0xC000
WS_OP = 0x100000
WS_APC = 0x200000
WS_ST = 0x400000
WS_SIZE = 0x800000
SM, W0, VL = 0x0, 0x5000, 0x15000
RED1, RED_GU, QL, PL, FL, RL = SM, SM + 0x1000, SM + 0x1800, SM + 0x1C00, SM + 0x2C00, SM + 0x3000
F_KDONE, F_CLR, F_J1, F_J2, F_WD, F_GO, F_JF, F_MODE, F_KHALF, MLL, MLG, F_WF, MLW, F_X1, F_ACT, F_GI = [FL + o for o in (
    0, 0x10, 0x20, 0x30, 0x50, 0x60, 0x70, 0x74, 0x78, 0x80, 0x100, 0x40, 0x180, 0x14, 0x18, 0x200)]
F_VQ, F_VM, F_G2 = FL + 0x210, FL + 0x214, FL + 0x220
F_VT = FL + 0x230
F_POL = FL + 0x240
F_WL = FL + 0x250
WS_PR = 0x90000
WS_XC = 0xA0000
OL, MLW4 = SM, SM + 0xA00
WDN = W0 + 0x8000
LDS_SIZE = 0x25000

WS, SC_, SA_, SB_, SX_, SOUT = [f"s[{r}:{r+3}]" for r in range(32, 56, 4)]
DBG = SC_
SRDN = dict(WS=32, SC_=36, DBG=36, SA_=40, SB_=44, SX_=48, SOUT=52)
KARG = dict(x=4, k=6, v=8, wq=10, wo=12, wg=16, wu=18, wd=20, c=22, wmod=24, out=26, dbg=28, ws=30)
sX, sJ, sB, sS, sW, sG, sCNT, sMODE = [f"s{r}" for r in range(72, 80)]
T = [f"s{r}" for r in range(80, 92)] + [f"s{r}" for r in range(56, 72)]
FULL = "s[92:93]"
MA, MB_, MC = "s[94:95]", "s[96:97]", "s[98:99]"
LIM_G = 40000
LIM_L = 400000


def f32(x):
    return "0x%08x" % struct.unpack("<I", struct.pack("<f", x))[0]


LOG2E = 1.4426950408889634


def v(n, c=1):
    return f"v{n}" if c == 1 else f"v[{n}:{n+c-1}]"


class Gen:
    def __init__(self, **o):
        self.o = dict(depth=6, kpre=2, rotmul=9, stamps=0, force_slow=0, wpol="nt", dry=0, noop=0, nog=0, nojan=0,
                      so=0, dm=3, rx=9, rb=8, rs=5, blocked=0, wdepth=6, early=4, vdepth=0, jfgo=16, mdepth=6, qlim=200, pk=1, pgap=3, pke=1, pgape=10, gate=0, vin=1, goat=15, goat3=15, goatc=15,
                      kdb=0, kd3=0, vdb=0, goq=4, bhi=16, blo=4, lated=1, dbgt=0, padto=0, sq=0, sml=0, slim=60, vq=-1, vm=-1, jfw=0, sgap=0, pret=0, g1=0, g2=0, kdq=8, lxk=8, lxv=8, g17=0, g27=0, pkx=1, pgx=30, vlast=0, apc=0, numa=0, optp=0, nl=0, gw=0, pol=0, ap=0, aph=64, apf=64, apk=1, apg=8, apa=0, vds=0, vts=0, hk=0, mx=0, mq=0, t1=0, dj=12, pcl=4000, pka=1, pga=4, xm=0, opk=0, sjf=0, jt=0, jv=0, fa=0)
        self.o.update(o)
        global G_QL
        G_QL = 0x6000 if self.o["nl"] else 0xB000 if self.o["optp"] else 0x5000
        self.A = Asm()
        self.deferred = []
        self.nstamp = 0

    def srd(self, name, karg, size):
        A = self.A
        r = SRDN[name]
        k = KARG[karg]
        A(f"s_mov_b32 s{r}, s{k}")
        A(f"s_mov_b32 s{r+1}, s{k+1}")
        A(f"s_mov_b32 s{r+2}, {size:#x}")
        A(f"s_mov_b32 s{r+3}, 0x20000")

    def lane_addr(self, dst, tmp, terms, lane=1):
        A = self.A
        first = True
        for lsb, width, sh in terms:
            if first:
                A(f"v_bfe_u32 v{dst}, v{lane}, {lsb}, {width}")
                if sh:
                    A(f"v_lshlrev_b32 v{dst}, {sh}, v{dst}")
                first = False
            else:
                A(f"v_bfe_u32 v{tmp}, v{lane}, {lsb}, {width}")
                A(f"v_lshl_add_u32 v{dst}, v{tmp}, {sh}, v{dst}")

    def stamp(self, idx):
        if self.o["stamps"]:
            self.A(f"s_memrealtime s[{4+2*idx}:{5+2*idx}]")

    def stamp_init(self):
        if self.o["stamps"]:
            for i in range(1, 14):
                self.A(f"s_mov_b32 s{4+2*i}, 0")
            self.A("s_mov_b32 s4, s100")

    def stamp_flush(self):
        if not self.o["stamps"]:
            return
        A = self.A
        A("s_memrealtime s[30:31]")
        A("s_mov_b64 exec, 1")
        A("s_waitcnt vmcnt(0) lgkmcnt(0)")
        A(f"s_mul_i32 {T[0]}, s2, 12")
        A(f"s_add_u32 {T[0]}, {T[0]}, s3")
        A(f"s_lshl_b32 {T[0]}, {T[0]}, 6")
        A(f"s_add_u32 {T[0]}, {T[0]}, {WS_ST:#x}")
        A("v_mov_b32 v20, 0")
        for q in range(4):
            for e in range(4):
                i = 4 * q + e
                A(f"v_mov_b32 v{16+e}, " + (f"s{4+2*i}" if i < 14 else "0"))
            A(f"buffer_store_dwordx4 v[16:19], v20, {WS}, {T[0]} offen offset:{16*q}")
        if self.o["dbgt"]:
            A("s_load_dwordx2 s[36:37], s[0:1], 96")
            A("s_mov_b32 s38, 256")
            A("s_mov_b32 s39, 0x20000")
            A(f"s_lshl_b32 {T[0]}, s2, 4")
            A(f"s_add_u32 {T[0]}, {T[0]}, s3")
            A("s_waitcnt lgkmcnt(0)")
            slot = 0
            for wg, wv, sts in [(0, 0, [0, 5]), (32, 0, [2, 3, 5]), (128, 4, [1, 2]), (128, 8, [7]),
                                (128, 0, [6, 7, 8, 9, 10, 11, 13]), (255, 11, [0])]:
                l = A.newlabel("DT")
                A(f"s_cmp_lg_u32 {T[0]}, {wg*16+wv}")
                A(f"s_cbranch_scc1 {l}")
                for i in sts:
                    A(f"v_mov_b32 v16, s{4+2*i}")
                    A(f"buffer_store_dword v16, v20, s[36:39], 0 offen offset:{4*slot} sc1")
                    slot += 1
                A.label(l)
                A("s_nop 0")

    def maxtree(self, regs, dst):
        A = self.A
        regs = list(regs)
        if len(regs) == 1:
            return regs[0]
        if len(regs) == 2:
            A(f"v_max_u32 v{dst}, v{regs[0]}, v{regs[1]}")
            return dst
        A(f"v_max3_u32 v{dst}, v{regs[0]}, v{regs[1]}, v{regs[2]}")
        regs = regs[3:]
        while len(regs) >= 2:
            A(f"v_max3_u32 v{dst}, v{dst}, v{regs[0]}, v{regs[1]}")
            regs = regs[2:]
        if regs:
            A(f"v_max_u32 v{dst}, v{dst}, v{regs[0]}")
        return dst

    def delay(self, n):
        A = self.A
        if n <= 4:
            for _ in range(n):
                A("s_nop 15")
            return
        L = A.newlabel("DL")
        A(f"s_mov_b32 {sCNT}, {n-1}")
        A.label(L)
        A("s_nop 13")
        A(f"s_sub_u32 {sCNT}, {sCNT}, 1")
        A(f"s_cbranch_scc0 {L}")

    def poll(self, loads, regs, tmp, sent="-1", lds=False, restore=FULL, first=None, k=1, gap=0):
        A = self.A
        L, D = A.newlabel("P"), A.newlabel("PD")
        for ld, lim in ([first] if first else []) + [(loads, LIM_L if lds else LIM_G)]:
            L0 = A.newlabel("P")
            for _ in range(k - 1):
                for l in ld:
                    A(l)
                self.delay(gap)
            A(f"s_mov_b32 {sCNT}, {lim}")
            A.label(L0)
            for l in ld:
                A(l)
            A("s_waitcnt lgkmcnt(0)" if lds else f"s_waitcnt vmcnt({(k-1)*len(ld)})")
            m = self.maxtree(regs, tmp)
            A(f"v_cmp_eq_u32 vcc, {sent}, v{m}")
            A(f"s_cbranch_vccz {D}")
            if not lds:
                A("s_mov_b64 exec, vcc")
            A(f"s_sub_u32 {sCNT}, {sCNT}, 1")
            A(f"s_cbranch_scc0 {L0}")
            k = 1
        A.label(D)
        if not lds:
            A(f"s_mov_b64 exec, {restore}")
        else:
            A("s_nop 0")

    def tpoll(self, loads, regs, tmp):
        self.poll(loads, regs, tmp, k=self.o["pk"], gap=self.o["pgap"])

    def lds_wait(self, addr, n, va, vt):
        A = self.A
        A(f"v_mov_b32 v{va}, {addr:#x}")
        if n == 1:
            self.poll([f"ds_read_b32 v{vt}, v{va}"], [vt], vt + 1, lds=True)
        else:
            self.poll([f"ds_read_b128 {v(vt,4)}, v{va}"], list(range(vt, vt + 4)), vt + 4, lds=True)

    def lds_wait_w(self, base, va, vt):
        A = self.A
        A(f"s_lshl_b32 {T[11]}, {sW}, 2")
        A(f"s_add_u32 {T[11]}, {T[11]}, {base:#x}")
        A(f"v_mov_b32 v{va}, {T[11]}")
        self.poll([f"ds_read_b32 v{vt}, v{va}"], [vt], vt + 1, lds=True)

    def lds_set_w(self, base, va, vt):
        A = self.A
        A(f"s_lshl_b32 {T[11]}, {sW}, 2")
        A(f"s_add_u32 {T[11]}, {T[11]}, {base:#x}")
        A(f"v_mov_b32 v{va}, {T[11]}")
        A(f"v_mov_b32 v{vt}, 1")
        A(f"ds_write_b32 v{va}, v{vt}")

    def pub(self, stores):
        A = self.A
        if self.o["force_slow"]:
            for s in stores:
                A(s + " sc1")
            return
        Ls, Lb = A.newlabel("SLOW"), A.newlabel("BACK")
        A(f"s_cmp_eq_u32 {sMODE}, 1")
        A(f"s_cbranch_scc0 {Ls}")
        for s in stores:
            A(s)
        A.label(Lb)
        A("s_nop 0")
        self.deferred.append((Ls, [s + " sc1" for s in stores], Lb))

    def get_mode(self, va, vt):
        A = self.A
        self.lds_wait(F_MODE, 1, va, vt)
        A(f"v_readfirstlane_b32 {sMODE}, v{vt}")

    def rbf(self, d, s):
        self.A(f"v_cvt_pk_bf16_f32 v{d}, 0, v{s}")

    def selreduce(self, a, out):
        A = self.A
        for p in (0, 2):
            for k in range(4):
                A(f"v_permlane16_swap_b32 v{a[k]+p}, v{a[k]+p+1}")
        A(f"v_add_f32 v{a[0]}, v{a[0]}, v{a[1]+1}")
        A(f"v_add_f32 v{a[0]+2}, v{a[0]+2}, v{a[1]+3}")
        A(f"v_add_f32 v{a[2]}, v{a[2]}, v{a[3]+1}")
        A(f"v_add_f32 v{a[2]+2}, v{a[2]+2}, v{a[3]+3}")
        A(f"v_permlane32_swap_b32 v{a[0]}, v{a[0]+2}")
        A(f"v_permlane32_swap_b32 v{a[2]}, v{a[2]+2}")
        A(f"v_add_f32 v{out}, v{a[0]}, v{a[2]+2}")

    def treduce(self, r, out):
        A = self.A
        A(f"v_permlane32_swap_b32 v{r}, v{r+2}")
        A(f"v_permlane32_swap_b32 v{r+1}, v{r+3}")
        A(f"v_add_f32 v{r}, v{r}, v{r+2}")
        A(f"v_add_f32 v{r+1}, v{r+1}, v{r+3}")
        A(f"v_permlane16_swap_b32 v{r}, v{r+1}")
        A(f"v_add_f32 v{out}, v{r}, v{r+1}")

    def allred(self, op, r, t, rows=True):
        A = self.A
        A(f"{op}_dpp v{r}, v{r}, v{r} row_ror:4 row_mask:0xf bank_mask:0xf")
        A(f"{op}_dpp v{r}, v{r}, v{r} row_ror:8 row_mask:0xf bank_mask:0xf")
        if rows:
            for sw in ("v_permlane32_swap_b32", "v_permlane16_swap_b32"):
                A(f"v_mov_b32 v{t}, v{r}")
                A(f"{sw} v{t}, v{r}")
                A(f"{op} v{r}, v{r}, v{t}")

    def unpack(self, src, dst, n=4):
        A = self.A
        for p in range(n):
            A(f"v_lshlrev_b32 v{dst+2*p}, 16, v{src+p}")
            A(f"v_and_b32 v{dst+2*p+1}, 0xffff0000, v{src+p}")

    def ln(self, X, ONE, D, t, out, nanchk=False):
        A = self.A
        for i in range(4):
            A(f"v_mfma_f32_16x16x32_bf16 {v(D,4)}, {v(ONE,4)}, {v(X+4*i,4)}, " + ("0" if i == 0 else v(D, 4)))
        for i in range(16):
            q = t + (i & 1)
            A(f"v_dot2_f32_bf16 v{q}, v{X+i}, v{X+i}, " + ("0" if i < 2 else f"v{q}"))
        self.unpack(X, out)
        A(f"v_add_f32 v{t}, v{t}, v{t+1}")
        self.allred("v_add_f32", D, t + 1, rows=False)
        self.allred("v_add_f32", t, t + 1)
        A(f"v_mul_f32 v{D}, {f32(1/512)}, v{D}")
        self.rbf(t + 2, D)
        A(f"v_mul_f32 v{D+1}, v{D}, v{D}")
        A(f"v_mul_f32 v{t}, {f32(1/512)}, v{t}")
        A(f"v_sub_f32 v{t}, v{t}, v{D+1}")
        if nanchk:
            A(f"v_cmp_u_f32 vcc, v{t}, v{t}")
        A(f"v_max_f32 v{t}, 0, v{t}")
        self.rbf(t, t)
        A(f"v_add_f32 v{t}, {f32(1e-5)}, v{t}")
        self.rbf(t, t)
        A(f"v_sqrt_f32 v{t}, v{t}")
        for p in range(4):
            A(f"v_pk_add_f32 {v(out+2*p,2)}, {v(out+2*p,2)}, {v(t+2,2)} op_sel_hi:[1,0] neg_lo:[0,1] neg_hi:[0,1]")
        self.rbf(t, t)
        A(f"v_rcp_f32 v{t+4}, v{t}")
        for e in range(8):
            self.rbf(out + e, out + e)
        for p in range(4):
            A(f"v_pk_mul_f32 {v(out+2*p,2)}, {v(out+2*p,2)}, {v(t+4,2)} op_sel_hi:[1,0]")
        for e in range(8):
            self.rbf(out + e, out + e)

    def prep_mod(self, SH, SCL, sh_out, c1_out):
        A = self.A
        self.unpack(SCL, c1_out)
        self.unpack(SH, sh_out)
        for e in range(8):
            A(f"v_add_f32 v{c1_out+e}, 1.0, v{c1_out+e}")
        for e in range(8):
            self.rbf(c1_out + e, c1_out + e)

    def combine(self, LNV, C1, SH, out):
        A = self.A
        for p in range(4):
            A(f"v_pk_mul_f32 {v(LNV+2*p,2)}, {v(LNV+2*p,2)}, {v(C1+2*p,2)}")
        for e in range(8):
            self.rbf(LNV + e, LNV + e)
        for p in range(4):
            A(f"v_pk_add_f32 {v(LNV+2*p,2)}, {v(LNV+2*p,2)}, {v(SH+2*p,2)}")
        for p in range(4):
            A(f"v_cvt_pk_bf16_f32 v{out+p}, v{LNV+2*p}, v{LNV+2*p+1}")

    def dma(self, voff, srd, soff, ldsaddr_s, ldsconst):
        A = self.A
        A(f"s_add_u32 m0, {ldsaddr_s}, {ldsconst:#x}")
        pol = self.o["wpol"]
        A(f"buffer_load_dwordx4 v{voff}, {srd}, {soff} offen {pol} lds".replace("  ", " "))


    def mask(self, m, lo, hi=None):
        r = int(m[2:].split(":")[0])
        self.A(f"s_mov_b32 s{r}, {lo:#x}")
        self.A(f"s_mov_b32 s{r+1}, {(lo if hi is None else hi):#x}")

    def pack_dw(self, val, dst, t):
        A = self.A
        A(f"v_mov_b32_dpp v{t}, v{val} quad_perm:[1,0,3,2] row_mask:0xf bank_mask:0xf")
        A(f"v_cvt_pk_bf16_f32 v{dst}, v{val}, v{t}")

    def pack_x4(self, val, dst):
        A = self.A
        self.pack_dw(val, dst, dst + 1)
        for i in (1, 2, 3):
            A(f"v_mov_b32_dpp v{dst+i}, v{dst} row_shl:{2*i} row_mask:0xf bank_mask:0xf")

    def quad_x4(self, d):
        for i in (1, 2, 3):
            self.A(f"v_mov_b32_dpp v{d+i}, v{d} quad_perm:[{i},{i},{i},{i}] row_mask:0xf bank_mask:0xf")

    def silu(self):
        A = self.A
        self.unpack(164, 136)
        for e in range(8):
            A(f"v_mul_f32 v{144+e}, {f32(-LOG2E)}, v{136+e}")
        for e in range(8):
            A(f"v_exp_f32 v{144+e}, v{144+e}")
        for e in range(8):
            A(f"v_add_f32 v{144+e}, 1.0, v{144+e}")
        for e in range(8):
            A(f"v_rcp_f32 v{144+e}, v{144+e}")
        for e in range(8):
            A(f"v_mul_f32 v{136+e}, v{136+e}, v{144+e}")
        for p in range(4):
            A(f"v_cvt_pk_bf16_f32 v{164+p}, v{136+2*p}, v{137+2*p}")

    def qp(self):
        A = self.A
        self.lds_wait(F_JF, 1, 4, 12)
        if self.o["vq"] >= 0:
            self.lds_wait(F_VQ, 1, 4, 12)
        A("v_lshlrev_b32 v4, 4, v1")
        A(f"s_lshl_b32 {T[0]}, {sB}, 10")
        A(f"s_add_u32 {T[0]}, {T[0]}, {sG}")
        A(f"s_add_u32 {T[1]}, {T[0]}, {G_QL:#x}")
        if self.o["mx"] == 2:
            A(f"s_lshl_b32 {T[2]}, {sX}, 4")
            A(f"s_add_u32 {T[2]}, {T[2]}, {sB}")
            A(f"s_lshl_b32 {T[2]}, {T[2]}, 10")
            A(f"s_add_u32 {T[2]}, {T[2]}, {WS_XC:#x}")
            A(f"s_add_u32 {T[3]}, {T[2]}, 0x2000")
            A("v_mov_b32 v24, v4")
            A("s_mov_b32 exec_hi, 0")
            A("v_and_b32 v24, 0xf0, v4")
            A("s_mov_b64 exec, -1")
            self.lane_addr(25, 5, [(0, 5, 3), (5, 1, 2)])
            ld = lambda a, b: [f"buffer_load_dwordx4 v[16:19], v24, {WS}, {a} offen sc1",
                               f"buffer_load_dwordx4 v[20:23], v4, {WS}, {b} offen sc1"]
            self.poll(ld(T[0], T[2]), list(range(16, 24)), 5,
                      first=None if self.o["force_slow"] else (ld(T[1], T[3]), self.o["qlim"]))
            A("v_permlane32_swap_b32 v20, v22")
            A("v_permlane32_swap_b32 v21, v23")
            A("v_pk_add_f32 v[20:21], v[20:21], v[22:23]")
            A("v_cvt_pk_bf16_f32 v20, v20, v21")
            A(f"ds_write_b32 v25, v20 offset:{QL+256}")
            A(f"ds_write_b128 v24, v[16:19] offset:{QL}")
        else:
            self.poll([f"buffer_load_dwordx4 v[16:19], v4, {WS}, {T[0]} offen offset:{G_Q} sc1"], [16, 17, 18, 19], 5,
                      first=None if self.o["force_slow"] else
                      ([f"buffer_load_dwordx4 v[16:19], v4, {WS}, {T[1]} offen sc1"], self.o["qlim"]),
                      k=self.o["pke"], gap=self.o["pgape"])
            A(f"ds_write_b128 v4, v[16:19] offset:{QL}")
        self.stamp(4)
        A("s_waitcnt vmcnt(0)")

    SBLK = [20, 36, 52, 84]

    def spoll(self, off, lanes, chk, fail, lim):
        A = self.A
        sreg = [b + i for b in self.SBLK for i in range(16)]
        L, N, D = A.newlabel("SP"), A.newlabel("SN"), A.newlabel("SD")
        A("s_mov_b32 s68, s32")
        A("s_mov_b32 s69, s33")
        A(f"s_add_u32 s70, s32, {off}")
        A("s_addc_u32 s71, s33, 0")
        A(f"s_mov_b32 {sCNT}, {lim}")
        A.label(L)
        for i, b in enumerate(self.SBLK):
            A(f"s_load_dwordx16 s[{b}:{b+15}], s[70:71], {64*i} glc")
        A("s_waitcnt lgkmcnt(0)")
        pre = sreg[::8]
        A(f"s_max_u32 {T[2]}, s{pre[0]}, s{pre[1]}")
        for r in pre[2:]:
            A(f"s_max_u32 {T[2]}, {T[2]}, s{r}")
        A(f"s_cmp_eq_u32 {T[2]}, -1")
        A(f"s_cbranch_scc1 {N}")
        for r, (vg, ln) in zip(sreg, lanes):
            A(f"v_writelane_b32 v{vg}, s{r}, {ln}")
        m = self.maxtree(chk[0], chk[1])
        A(f"v_cmp_eq_u32 vcc, -1, v{m}")
        A(f"s_cbranch_vccz {D}")
        A.label(N)
        if self.o["sgap"]:
            Lg = A.newlabel("SG")
            A(f"s_mov_b32 {T[2]}, {self.o['sgap']}")
            A.label(Lg)
            A("s_nop 13")
            A(f"s_sub_u32 {T[2]}, {T[2]}, 1")
            A(f"s_cbranch_scc0 {Lg}")
        A(f"s_sub_u32 {sCNT}, {sCNT}, 1")
        A(f"s_cbranch_scc0 {L}")
        self.sfix()
        A(f"s_branch {fail}")
        A.label(D)
        self.sfix()

    def sfix(self):
        A = self.A
        A("s_mov_b32 s32, s68")
        A("s_mov_b32 s33, s69")
        A(f"s_mov_b32 s34, {WS_SIZE:#x}")
        A("s_mov_b32 s35, 0x20000")
        A(f"s_mov_b64 {FULL}, -1")
        if self.o["stamps"]:
            for i in range(8, 13):
                A(f"s_mov_b32 s{4+2*i}, 0")

    def sqp(self):
        A = self.A
        self.lds_wait(F_JF, 1, 3, 8)
        if self.o["vq"] >= 0:
            self.lds_wait(F_VQ, 1, 3, 8)
        A("v_lshlrev_b32 v7, 2, v1")
        A(f"s_lshl_b32 {T[0]}, {sB}, 10")
        A(f"s_lshl_b32 {T[3]}, {sW}, 8")
        A(f"s_add_u32 {T[0]}, {T[0]}, {T[3]}")
        A(f"s_add_u32 {T[0]}, {T[0]}, {sG}")
        A(f"v_add_u32 v9, {T[3]}, v7")
        if not self.o["force_slow"]:
            A(f"s_add_u32 {T[1]}, {T[0]}, {G_QL:#x}")
            self.spoll(T[1], [(8, i) for i in range(64)], ([8], 4), "K_qs", self.o["slim"])
            A("s_branch K_qd")
        A.label("K_qs")
        self.poll([f"buffer_load_dword v8, v7, {WS}, {T[0]} offen offset:{G_Q} sc1"], [8], 4)
        A.label("K_qd")
        A(f"ds_write_b32 v9, v8 offset:{QL}")

    def xt(self, pol=False):
        A = self.A
        A(f"s_getreg_b32 {T[1]}, hwreg(HW_REG_XCC_ID)")
        A(f"s_and_b32 {T[1]}, {T[1]}, 0xf")
        if pol:
            A(f"s_movk_i32 {T[0]}, {G_XT:#x}")
            A(f"v_mov_b32 v4, {WS_G:#x}")
            A("s_mov_b32 exec_hi, 0")
            A(f"v_mov_b32 v4, {sG}")
            A("s_mov_b32 exec_hi, -1")
            A("v_lshl_add_u32 v4, v1, 2, v4")
        else:
            A(f"s_add_u32 {T[0]}, {sG}, {G_XT:#x}")
            self.lane_addr(4, 5, [(0, 5, 2)])
        self.poll([f"buffer_load_dword v20, v4, {WS}, {T[0]} offen sc1"], [20], 5)
        if pol:
            A("v_cmp_eq_u32 vcc, 2, v20")
            A(f"s_bcnt1_i32_b32 {T[0]}, vcc_hi")
            A("v_cmp_eq_u32 vcc, 0, v20")
            A(f"s_bcnt1_i32_b32 {T[3]}, vcc_hi")
            A(f"s_cmp_gt_u32 {T[0]}, {T[3]}")
            A(f"s_cselect_b32 {T[0]}, 1, 0")
            A(f"v_mov_b32 v5, {T[0]}")
            A(f"v_mov_b32 v4, {F_POL:#x}")
            A("ds_write_b32 v4, v5")
        A(f"v_cmp_ne_u32 vcc, {T[1]}, v20")
        A("s_cmp_eq_u32 vcc_lo, 0")
        A(f"s_cselect_b32 {sMODE}, 1, 0")
        A(f"v_mov_b32 v20, {sMODE}")
        A(f"v_mov_b32 v4, {F_MODE:#x}")
        A("ds_write_b32 v4, v20")

    def mlred(self, rows):
        A = self.A
        A("v_max_f32_dpp v18, v16, v16 row_ror:4 row_mask:0xf bank_mask:0xf")
        A("v_max_f32_dpp v18, v18, v18 row_ror:8 row_mask:0xf bank_mask:0xf")
        if rows:
            A("v_mov_b32 v20, v18")
            A("v_permlane16_swap_b32 v20, v18")
            A("v_max_f32 v18, v18, v20")
        A("v_sub_f32 v16, v16, v18")
        A(f"v_mul_f32 v16, {f32(LOG2E)}, v16")
        A("v_exp_f32 v16, v16")
        A("v_mul_f32 v19, v16, v17")
        A("v_add_f32_dpp v19, v19, v19 row_ror:4 row_mask:0xf bank_mask:0xf")
        A("v_add_f32_dpp v19, v19, v19 row_ror:8 row_mask:0xf bank_mask:0xf")
        if rows:
            A("v_mov_b32 v20, v19")
            A("v_permlane16_swap_b32 v20, v19")
            A("v_add_f32 v19, v19, v20")

    def mlx(self):
        A = self.A
        self.get_mode(4, 12)
        self.lane_addr(4, 5, [(0, 4, 3)])
        self.lane_addr(12, 5, [(0, 5, 3)])
        A(f"v_mov_b32 v5, {F_CLR:#x}")
        A(f"s_lshl_b32 {T[0]}, {sB}, 8")
        A(f"s_add_u32 {T[0]}, {T[0]}, {sG}")
        A(f"s_add_u32 {T[0]}, {T[0]}, {G_ML:#x}")
        A(f"s_lshl_b32 {T[1]}, {sS}, 5")
        A(f"s_add_u32 {T[1]}, {T[1]}, {T[0]}")
        self.poll([f"ds_read_b64 v[16:17], v4 offset:{MLL}", "ds_read_b32 v18, v5"], [16, 17, 18], 19, lds=True)
        self.stamp(5)
        self.mlred(False)
        A("v_min_u32 v16, 0xfffffffe, v16")
        A("s_mov_b64 exec, 0xffff")
        A(f"ds_write_b32 v9, v16 offset:{MLG}")
        A("s_mov_b64 exec, 15")
        self.pub([f"buffer_store_dwordx2 v[18:19], v4, {WS}, {T[1]} offen"])
        A("s_mov_b64 exec, -1")
        A(f"s_cmp_lt_u32 {sJ}, 16")
        A("s_cbranch_scc1 L_fin")
        if self.o["vm"] >= 0:
            self.lds_wait(F_VM, 1, 5, 20)
        if self.o["sml"] and not self.o["force_slow"]:
            A(f"s_cmp_eq_u32 {sMODE}, 1")
            A("s_cbranch_scc0 K_ms")
            A("v_mov_b32 v16, 0")
            A("v_mov_b32 v17, 0")
            self.spoll(T[0], [(16 + (i & 1), i >> 1) for i in range(64)], ([16, 17], 5), "K_ms", 4 * self.o["slim"])
            A("s_branch K_md")
        A.label("K_ms")
        if self.o["t1"]:
            A(f"s_lshl_b32 {T[1]}, {sW}, 9")
            A(f"s_add_u32 {T[0]}, {T[1]}, {sG}")
            A(f"s_add_u32 {T[0]}, {T[0]}, {G_ML:#x}")
            A("v_lshlrev_b32 v12, 3, v1")
            A(f"s_lshl_b32 {T[1]}, {sW}, 8")
            A(f"v_add_u32 v9, {T[1]}, v9")
        self.poll([f"buffer_load_dwordx2 v[16:17], v12, {WS}, {T[0]} offen sc1"], [16, 17], 5)
        A.label("K_md")
        self.mlred(True)
        A("v_rcp_f32 v19, v19")
        A("v_mul_f32 v16, v16, v19")
        A("v_min_u32 v16, 0xfffffffe, v16")
        if self.o["t1"]:
            A(f"ds_write_b32 v9, v16 offset:{MLW4}")
        else:
            A("s_mov_b32 exec_hi, 0")
            A(f"ds_write_b32 v9, v16 offset:{MLW}")
            A("s_mov_b64 exec, -1")
        self.stamp(6)

    def get_scl(self, S):
        A = self.A
        self.lane_addr(4, 5, [(0, 1, 3)])
        self.poll([f"ds_read_b64 {v(S+2*i,2)}, v4 offset:{MLG+16*i}" for i in range(4)], list(range(S, S + 8)), 5,
                  lds=True)

    def op_addr(self, t):
        A = self.A
        A(f"s_lshl_b32 {t}, {sX}, 5")
        A(f"s_lshl_b32 {T[11]}, {sB}, 3")
        A(f"s_add_u32 {t}, {t}, {T[11]}")
        A(f"s_add_u32 {t}, {t}, {sS}")
        A(f"s_lshl_b32 {t}, {t}, 2")
        A(f"s_add_u32 {t}, {t}, {sW}")
        A(f"s_lshl_b32 {t}, {t}, 9")
        A(f"s_add_u32 {t}, {t}, {WS_OP:#x}")
        A(f"s_lshl_b32 {T[11]}, {sW}, 9")
        A(f"v_add_u32 v13, {T[11]}, v6")

    def op_pub(self, t, S=24):
        A = self.A
        self.poll([f"ds_read_b64 {v(16+2*i,2)}, v13 offset:{RL+2048*i}" for i in range(4)], list(range(16, 24)), 5,
                  lds=True)
        A(f"v_pk_mul_f32 v[16:17], v[16:17], {v(S,2)}")
        A(f"v_pk_mul_f32 v[20:21], v[20:21], {v(S+4,2)}")
        A(f"v_pk_fma_f32 v[16:17], v[18:19], {v(S+2,2)}, v[16:17]")
        A(f"v_pk_fma_f32 v[20:21], v[22:23], {v(S+6,2)}, v[20:21]")
        A("v_pk_add_f32 v[16:17], v[16:17], v[20:21]")
        self.pub([f"buffer_store_dwordx2 v[16:17], v6, {WS}, {t} offen"])

    def xsum(self, soffs, out, va=11):
        A = self.A
        n = len(soffs)
        self.poll([f"buffer_load_dwordx4 {v(16+4*i,4)}, v{va}, {WS}, {soffs[i]} offen sc1" for i in range(n)],
                  list(range(16, 16 + 4 * n)), 5, k=self.o["pkx"], gap=self.o["pgx"])
        A("v_pk_add_f32 v[32:33], v[16:17], v[20:21]")
        A("v_pk_add_f32 v[34:35], v[18:19], v[22:23]")
        if n == 4:
            A("v_pk_add_f32 v[36:37], v[24:25], v[28:29]")
            A("v_pk_add_f32 v[38:39], v[26:27], v[30:31]")
            A("v_pk_add_f32 v[32:33], v[32:33], v[36:37]")
            A("v_pk_add_f32 v[34:35], v[34:35], v[38:39]")
        self.treduce(32, out)

    def xsum3(self, soffs, D, out, atom, H):
        A = self.A
        n = len(soffs)
        adr = lambda k, b: f"{v(D+8*k+2*b,2)}, v11, {WS}, {soffs[k]} offen offset:{64*b}"
        ld = [f"buffer_load_dwordx2 {adr(k, b)} sc1" for k in range(n) for b in range(4)]
        at = [f"buffer_atomic_and_x2 {adr(k, b)} sc0 sc1" for k in range(n) for b in range(4)]
        regs = list(range(D, D + 8 * n, 1 if self.o["apa"] else 2))
        K = self.o["apk"] if atom else 1
        Dn = A.newlabel("XD")
        if atom and H < 64:
            L1, L2 = A.newlabel("XL"), A.newlabel("XA")
            A(f"s_mov_b32 {sCNT}, {LIM_G}")
            A.label(L1)
            for l in ld:
                A(l)
            A("s_waitcnt vmcnt(0)")
            m = self.maxtree(regs, 5)
            A(f"v_cmp_eq_u32 vcc, -1, v{m}")
            A(f"s_cbranch_vccz {Dn}")
            A("s_mov_b64 exec, vcc")
            A(f"s_bcnt1_i32_b64 {T[3]}, vcc")
            A(f"s_cmp_le_u32 {T[3]}, {H}")
            A(f"s_cbranch_scc1 {L2}")
            A(f"s_sub_u32 {sCNT}, {sCNT}, 1")
            A(f"s_cbranch_scc0 {L1}")
            A.label(L2)
        self.poll(at if atom else ld, regs, 5, k=K, gap=self.o["apg"])
        A.label(Dn)
        A(f"s_mov_b64 exec, {FULL}")
        S = D
        if n == 2:
            S = 32
            for b in range(4):
                A(f"v_pk_add_f32 {v(S+2*b,2)}, {v(D+2*b,2)}, {v(D+8+2*b,2)}")
        elif K > 1:
            S = 32
            for b in range(4):
                A(f"v_mov_b64 {v(S+2*b,2)}, {v(D+2*b,2)}")
        for i in range(4):
            A(f"v_permlane32_swap_b32 v{S+i}, v{S+4+i}")
        A(f"v_pk_add_f32 {v(S,2)}, {v(S,2)}, {v(S+4,2)}")
        A(f"v_pk_add_f32 {v(S+2,2)}, {v(S+2,2)}, {v(S+6,2)}")
        for e in range(2):
            A(f"v_permlane16_swap_b32 v{S+e}, v{S+2+e}")
        A(f"v_pk_add_f32 {v(S,2)}, {v(S,2)}, {v(S+2,2)}")
        A(f"v_add_f32_dpp v{out}, v{S}, v{S} row_ror:8 row_mask:0xf bank_mask:0x3")
        A(f"v_add_f32_dpp v{out}, v{S+1}, v{S+1} row_ror:8 row_mask:0xf bank_mask:0xc")

    def dry_begin(self, name):
        A = self.A
        if self.o["dry"] & (1 if name == "TA" else 2):
            A(f"s_mov_b64 {FULL}, 0")
            A("s_mov_b64 exec, 0")
            A(f"s_branch {name}_body")
        A.label(f"{name}_real")

    def dry_end(self, name):
        A = self.A
        A.label(f"{name}_end")
        if self.o["dry"] & (1 if name == "TA" else 2):
            A("s_cmp_lg_u32 s92, 0")
            A("s_cbranch_scc1 L_fin")
            A(f"s_mov_b64 {FULL}, -1")
            A("s_mov_b64 exec, -1")
            A(f"s_branch {name}_real")
        elif name == "TB" and self.o["dry"] & 4:
            A("s_cmp_lg_u32 s92, 0")
            A("s_cbranch_scc1 L_fin")
            A(f"s_mov_b64 {FULL}, -1")
            A("s_mov_b64 exec, -1")
            A("s_branch TB_back")
        else:
            A("s_branch L_fin")

    def chain(self):
        A = self.A
        A.label("L_chain")
        if self.o["so"] == 1:
            A("s_barrier")
            A("s_branch L_end")
            return
        A("s_setprio 2")
        self.lane_addr(2, 4, [(0, 2, 10), (2, 2, 6), (4, 2, 4)])
        self.lane_addr(3, 4, [(2, 2, 8), (5, 1, 7), (0, 2, 5), (4, 1, 4)])
        A("v_lshlrev_b32 v6, 3, v1")
        A("v_lshlrev_b32 v8, 1, v1")
        A("v_lshlrev_b32 v9, 2, v1")
        self.lane_addr(11, 4, [(0, 3, 4)])
        self.lane_addr(5, 4, [(4, 1, 5)])
        A("v_xor_b32 v11, v11, v5")
        A("v_lshrrev_b32 v10, 3, v1")
        self.lane_addr(7, 4, [(4, 2, 10), (2, 2, 7), (0, 2, 3), (3, 2, 5)])
        A(f"s_cmp_ge_u32 {sJ}, 16")
        A("s_cbranch_scc1 L_chainA")
        self.chainB()
        self.chainA()

    def chainB(self):
        A = self.A
        WD = self.o["wdepth"]
        for i in range(4):
            A(f"s_add_u32 {T[4+i]}, {sW}, {i}")
            A(f"s_and_b32 {T[4+i]}, {T[4+i]}, 3")
            A(f"s_lshl_b32 {T[4+i]}, {T[4+i]}, 8")
        A(f"s_lshl_b32 {T[8]}, {sW}, 10")
        A(f"s_lshl_b32 {T[9]}, {sW}, 14")
        A(f"s_lshl_b32 {T[10]}, {sW}, 7")
        A(f"s_cmp_lt_u32 {sJ}, 4")
        A("s_cbranch_scc1 B_mc")
        A(f"s_sub_u32 {T[0]}, {sJ}, 4")
        A(f"s_cmp_lt_u32 {T[0]}, 8")
        A("s_cbranch_scc1 B_isq")
        A(f"s_lshl_b32 {T[0]}, {sX}, 2")
        A(f"s_add_u32 {T[0]}, {T[0]}, {sJ}")
        A(f"s_add_u32 {T[0]}, {T[0]}, 4")
        A(f"s_movk_i32 {T[12]}, 6144")
        A(f"s_lshl_b32 {T[1]}, {T[0]}, 7")
        A(f"s_lshl_b32 {T[13]}, {T[0]}, 9")
        A(f"s_add_u32 {T[13]}, {T[13]}, {T[10]}")
        A(f"s_add_u32 {T[13]}, {T[13]}, {WS_MOD:#x}")
        A(f"s_mov_b32 {T[14]}, 1")
        A("v_mov_b32 v14, v8")
        A("s_waitcnt lgkmcnt(0)")
        self.srd("SA_", "wmod", 512 * 3072 * 2)
        A("s_branch B_t64")
        A.label("B_isq")
        A(f"s_movk_i32 {T[12]}, 8192")
        A(f"s_lshl_b32 {T[1]}, {sX}, 10")
        A(f"s_lshl_b32 {T[2]}, {T[0]}, 7")
        A(f"s_add_u32 {T[1]}, {T[1]}, {T[2]}")
        A(f"s_lshl_b32 {T[13]}, {sW}, 5")
        A(f"s_add_u32 {T[13]}, {T[13]}, {T[2]}")
        A(f"s_add_u32 {T[13]}, {T[13]}, {sG}")
        A(f"s_mov_b32 {T[14]}, 0")
        self.lane_addr(14, 4, [(4, 2, 10), (0, 4, 1)])
        A("s_waitcnt lgkmcnt(0)")
        self.srd("SA_", "wq", 4096 * 512 * 2)
        A.label("B_t64")
        if self.o["mx"]:
            A(f"s_bfe_u32 {T[3]}, {T[1]}, 0x20008")
            if self.o["mq"]:
                A(f"s_lshl_b32 {T[15]}, {T[14]}, 2")
                A(f"s_add_u32 {T[3]}, {T[3]}, {T[15]}")
            A(f"s_cmp_eq_u32 {T[3]}, 1")
            A(f"s_cselect_b32 {T[15]}, 0x80, 0")
            A(f"s_and_b32 {T[26]}, {T[15]}, {T[10]}")
            A(f"s_xor_b32 {T[1]}, {T[1]}, {T[26]}")
            A(f"s_lshr_b32 {T[24]}, {sJ}, 3")
            A(f"s_lshl_b32 {T[24]}, {T[24]}, 12")
            A(f"s_and_b32 {T[3]}, {sJ}, 1")
            A(f"s_lshl_b32 {T[3]}, {T[3]}, 11")
            A(f"s_add_u32 {T[24]}, {T[24]}, {T[3]}")
            A(f"s_lshl_b32 {T[3]}, {sX}, 14")
            A(f"s_add_u32 {T[24]}, {T[24]}, {T[3]}")
            A(f"s_add_u32 {T[24]}, {T[24]}, {WS_XC:#x}")
            A(f"s_lshr_b32 {T[3]}, {sW}, 1")
            A(f"s_lshl_b32 {T[3]}, {T[3]}, 10")
            A(f"s_xor_b32 {T[25]}, {T[24]}, 0x800")
            A(f"s_add_u32 {T[25]}, {T[25]}, {T[3]}")
            A(f"s_lshl_b32 {T[3]}, {sW}, 2")
            A(f"s_add_u32 {T[24]}, {T[24]}, {T[3]}")
        if self.o["hk"] == 1:
            A(f"s_bfe_u32 {T[3]}, {T[1]}, 0x30007")
            A(f"s_cmp_eq_u32 {T[3]}, 3")
            A(f"s_cselect_b32 {T[3]}, 0x480, 0")
            A(f"s_xor_b32 {T[1]}, {T[1]}, {T[3]}")
        if self.o["hk"] == 2:
            A(f"s_xor_b32 {T[1]}, {T[1]}, {T[10]}")
        if self.o["hk"] == 3:
            A(f"s_and_b32 {T[3]}, {T[10]}, 0x80")
            A(f"s_xor_b32 {T[1]}, {T[1]}, {T[3]}")
        self.srd("SX_", "x", 4096)
        self.srd("SC_", "c", 4096)
        A(f"v_mul_u32_u24 v10, {T[12]}, v10")
        A("v_add_u32 v10, v10, v11")
        A("v_xor_b32 v11, 64, v10")
        A(f"s_mul_i32 {T[2]}, {T[10]}, {T[12]}")
        A(f"s_add_u32 {T[1]}, {T[1]}, {T[2]}")
        A(f"s_lshl_b32 {T[2]}, {T[12]}, 3")
        A(f"buffer_load_dwordx4 v[164:167], v2, {SC_}, {T[4]} offen")
        for i in range(4):
            A(f"buffer_load_dwordx4 {v(16+4*i,4)}, v2, {SX_}, {T[4+i]} offen")
        for i in range(WD):
            self.dma(10 + (i & 1), SA_, T[1], T[9], W0 + i * 1024)
            A(f"s_add_u32 {T[1]}, {T[1]}, {T[2]}")
        A("s_barrier")
        self.srd("WS", "ws", WS_SIZE)
        self.gu_srd()
        self.stamp_init()
        A(f"s_bfe_u32 {T[3]}, {T[1]}, 0x30007")
        A(f"s_cmp_eq_u32 {T[3]}, 3")
        A("s_cbranch_scc1 B_dmx")
        for var, dep, go in (("n", WD, self.o["goat"]), ("x", WD, self.o["goat3"])):
            A.label("B_dm" + var)
            if go < WD:
                self.set_go()
            for i in range(WD, 16):
                if i >= dep:
                    A(f"s_waitcnt vmcnt({dep-1})")
                self.dma(10 + (i & 1), SA_, T[1], T[9], W0 + i * 1024)
                if i < 15:
                    A(f"s_add_u32 {T[1]}, {T[1]}, {T[2]}")
                if i == go:
                    self.set_go()
            if var != "x":
                A("s_branch B_dmd")
        A.label("B_dmd")
        for r in range(160, 164):
            A(f"v_mov_b32 v{r}, 0x3f803f80")
        A(f"v_add_u32 v7, {T[9]}, v7")
        A("s_waitcnt vmcnt(16)")
        A(f"s_cmp_eq_u32 {T[14]}, 0")
        A("s_cbranch_scc1 B_pq")
        self.silu()
        A("s_branch B_pd")
        A.label("B_pq")
        self.ln(16, 160, 32, 152, 128)
        A.label("B_pd")
        if self.o["jt"]:
            A(f"s_waitcnt vmcnt({self.o['jv']})")
            self.lds_set_w(F_WL, 12, 13)
        A("s_waitcnt vmcnt(0)")
        self.stamp(1)
        if self.o["so"] == 2:
            A("s_branch L_fin")
        for c in range(4):
            if c:
                A(f"v_xor_b32 v4, {c<<5}, v7")
            for kk in range(4):
                for hf in range(2):
                    A(f"ds_read_b64_tr_b16 {v(64+16*c+4*kk+2*hf,2)}, v{4 if c else 7} offset:{W0+kk*4096+hf*512}")
            A("s_waitcnt lgkmcnt(0)")
        self.lds_set_w(F_WF, 12, 13)
        A(f"s_cmp_lg_u32 {T[14]}, 0")
        A("s_cbranch_scc1 B_mm")
        self.lds_wait(F_JF, 1, 4, 12)
        self.stamp(2)
        for i in range(8):
            A(f"s_add_u32 {T[16+i]}, {T[8]}, {WS_MP + (i>>2)*0x1000 + (i&3)*0x2000:#x}")
        if self.o["g1"]:
            A(f"s_lshl_b32 {T[11]}, {sW}, 2")
            A(f"v_mov_b32 v12, {T[11]}")
        self.poll([f"buffer_load_dwordx4 {v(16+4*i,4)}, v3, {WS}, {T[16+i]} offen sc1" for i in range(8)] +
                  ([f"ds_write_b32 v12, v12 offset:{F_G2}"] if self.o["g1"] else []),
                  list(range(16, 48)), 5)
        self.stamp(3)
        for p in range(4):
            A(f"v_pk_add_f32 {v(144+2*p,2)}, {v(32+2*p,2)}, {v(40+2*p,2)}")
        for p in range(4):
            A(f"v_pk_add_f32 {v(136+2*p,2)}, {v(16+2*p,2)}, {v(24+2*p,2)}")
        for e in range(8):
            self.rbf(144 + e, 144 + e)
        for e in range(8):
            A(f"v_add_f32 v{144+e}, 1.0, v{144+e}")
        for e in range(8):
            self.rbf(144 + e, 144 + e)
        for e in range(8):
            self.rbf(136 + e, 136 + e)
        self.combine(128, 144, 136, 164)
        A.label("B_mm")
        accb = [32, 48, 128, 144]
        for c in range(4):
            for kk in range(4):
                A(f"v_mfma_f32_16x16x32_bf16 {v(accb[c]+4*kk,4)}, v[164:167], {v(64+16*c+4*kk,4)}, 0")
        A(f"v_add_u32 v4, {T[8]}, v9")
        for c in range(4):
            self.selreduce([accb[c] + 4 * k for k in range(4)], 24 + c)
            A(f"ds_write_b32 v4, v{24+c} offset:{RED1+256*c}")
        A(f"s_lshl_b32 {T[0]}, {sW}, 8")
        A(f"v_add_u32 v4, {T[0]}, v9")
        A(f"v_mov_b32 v5, {F_JF:#x}")
        if self.o["mx"]:
            if self.o["mx"] == 2:
                A(f"s_mul_i32 {T[26]}, {T[26]}, {T[14]}")
            A(f"s_cmp_eq_u32 {T[26]}, 0")
            A("s_cbranch_scc1 B_nx1")
            self.poll(["ds_read_b32 v28, v5"], [28], 29, lds=True)
            A("v_lshlrev_b32 v30, 4, v1")
            A(f"buffer_store_dwordx4 v[24:27], v30, {WS}, {T[25]} offen sc1")
            A.label("B_nx1")
        self.poll([f"ds_read_b32 v{24+i}, v4 offset:{RED1+1024*i}" for i in range(4)] + ["ds_read_b32 v28, v5"],
                  list(range(24, 29)), 29, lds=True)
        if self.o["mx"]:
            A(f"s_cmp_eq_u32 {T[15]}, 0")
            A("s_cbranch_scc1 B_nx2")
            if self.o["mx"] == 2:
                A(f"s_cmp_lg_u32 {T[14]}, 0")
                A("s_cbranch_scc1 B_nx3")
                A("v_add_f32 v24, v24, v26")
                A("v_add_f32 v25, v25, v27")
                self.lane_addr(30, 29, [(4, 2, 10), (0, 4, 2)])
                A(f"s_and_b32 {T[0]}, {sJ}, 1")
                A(f"s_mul_i32 {T[0]}, {T[0]}, 0x300")
                A(f"s_lshl_b32 {T[3]}, {sW}, 6")
                A(f"s_add_u32 {T[0]}, {T[0]}, {T[3]}")
                A(f"s_lshl_b32 {T[3]}, {sX}, 14")
                A(f"s_add_u32 {T[0]}, {T[0]}, {T[3]}")
                A(f"s_add_u32 {T[0]}, {T[0]}, {WS_XC:#x}")
                A(f"s_xor_b32 {T[1]}, {T[0]}, 0x100")
                A(f"s_add_u32 {T[2]}, {T[0]}, 0x2000")
                A(f"s_add_u32 {T[3]}, {T[1]}, 0x2000")
                A(f"buffer_store_dword v24, v30, {WS}, {T[2]} offen")
                A(f"buffer_store_dword v25, v30, {WS}, {T[3]} offen")
                A(f"buffer_store_dword v24, v30, {WS}, {T[0]} offen sc1")
                A(f"buffer_store_dword v25, v30, {WS}, {T[1]} offen sc1")
                A("s_branch B_pubd")
                A.label("B_nx3")
            A("v_lshlrev_b32 v30, 4, v1")
            self.poll([f"buffer_load_dword v{25+2*i}, v30, {WS}, {T[24]} offen offset:{1024*i} sc1" for i in range(2)],
                      [25, 27], 29)
            A.label("B_nx2")
        A("v_add_f32 v24, v24, v25")
        A("v_add_f32 v26, v26, v27")
        A("v_add_f32 v24, v24, v26")
        self.pack_x4(24, 28)
        A("s_mov_b32 exec_lo, 0x01010101")
        A("s_mov_b32 exec_hi, 0x01010101")
        A(f"s_cmp_lg_u32 {T[14]}, 0")
        A("s_cbranch_scc1 B_pub")
        A(f"s_add_u32 {T[0]}, {T[13]}, {G_QL:#x}")
        A(f"buffer_store_dwordx4 v[28:31], v14, {WS}, {T[0]} offen")
        A.label("B_pub")
        A(f"buffer_store_dwordx4 v[28:31], v14, {WS}, {T[13]} offen sc1")
        A("s_mov_b64 exec, -1")
        A.label("B_pubd")
        self.lds_set_w(F_GO, 12, 13)
        self.stamp(5)
        A("s_branch B_post")
        A.label("B_mc")
        MD = self.o["mdepth"]
        A(f"s_and_b32 {T[0]}, {sJ}, 1")
        A(f"s_lshl_b32 {T[1]}, {sX}, 1")
        A(f"s_add_u32 {T[0]}, {T[0]}, {T[1]}")
        A(f"s_lshr_b32 {T[2]}, {sJ}, 1")
        A(f"s_lshl_b32 {T[3]}, {T[2]}, 2")
        A(f"s_add_u32 {T[3]}, {T[3]}, {sW}")
        A(f"s_mul_i32 {T[1]}, {T[3]}, {64*6144}")
        A(f"s_lshl_b32 {T[12]}, {T[0]}, 7")
        A(f"s_add_u32 {T[1]}, {T[1]}, {T[12]}")
        A(f"s_lshl_b32 {T[3]}, {T[3]}, 7")
        A("v_mul_u32_u24 v10, 0x1800, v10")
        A("v_add_u32 v10, v10, v11")
        A("v_xor_b32 v11, 64, v10")
        A("s_waitcnt lgkmcnt(0)")
        self.srd("SA_", "wmod", 512 * 3072 * 2)
        self.srd("SC_", "c", 4096)
        A(f"buffer_load_dwordx4 v[164:167], v2, {SC_}, {T[3]} offen")
        for i in range(8):
            if i == min(MD, 7):
                A("s_barrier")
                self.srd("WS", "ws", WS_SIZE)
                self.gu_srd()
                self.stamp_init()
            if i >= MD:
                A(f"s_waitcnt vmcnt({MD-1})")
            self.dma(10 + (i & 1), SA_, T[1], T[9], W0 + i * 1024)
            if i < 7:
                A(f"s_add_u32 {T[1]}, {T[1]}, {8*6144}")
        self.set_go()
        A(f"s_lshl_b32 {T[13]}, {T[0]}, 9")
        A(f"s_add_u32 {T[13]}, {T[13]}, {T[10]}")
        A(f"s_lshl_b32 {T[2]}, {T[2]}, 14")
        A(f"s_add_u32 {T[13]}, {T[13]}, {T[2]}")
        A(f"s_add_u32 {T[13]}, {T[13]}, {WS_MP:#x}")
        self.lane_addr(14, 4, [(2, 1, 13), (4, 2, 5), (3, 1, 4)])
        for r in range(160, 164):
            A(f"v_mov_b32 v{r}, 0x3f803f80")
        A(f"v_add_u32 v7, {T[9]}, v7")
        for c in (1, 2, 3):
            A(f"v_xor_b32 v{16+c}, {c<<5}, v7")
        A("s_waitcnt vmcnt(8)")
        self.silu()
        A(f"v_add_u32 v4, {T[8]}, v9")
        A(f"s_lshl_b32 {T[0]}, {sW}, 8")
        A(f"v_add_u32 v15, {T[0]}, v9")
        A(f"v_mov_b32 v5, {F_J2:#x}")
        for kk in range(2):
            A(f"s_waitcnt vmcnt({4-4*kk})")
            for c in range(4):
                for hf in range(2):
                    A(f"ds_read_b64_tr_b16 {v(64+8*c+4*kk+2*hf,2)}, v{16+c if c else 7} offset:{W0+kk*4096+hf*512}")
        self.stamp(1)
        if self.o["so"] == 2:
            A("s_branch L_fin")
        A("s_waitcnt lgkmcnt(0)")
        for c in range(4):
            for kk in range(2):
                A(f"v_mfma_f32_16x16x32_bf16 {v(32+8*c+4*kk,4)}, v[164:167], {v(64+8*c+4*kk,4)}, 0")
        self.lds_set_w(F_WF, 12, 13)
        for c in range(4):
            a = 32 + 8 * c
            for p in (0, 2):
                for k in range(2):
                    A(f"v_permlane16_swap_b32 v{a+4*k+p}, v{a+4*k+p+1}")
            A(f"v_add_f32 v{a}, v{a}, v{a+5}")
            A(f"v_add_f32 v{a+2}, v{a+2}, v{a+7}")
            A(f"v_permlane32_swap_b32 v{a}, v{a+2}")
            A(f"ds_write_b32 v4, v{a} offset:{RED1+256*c}")
        self.poll([f"ds_read_b32 v{24+i}, v15 offset:{RED1+1024*i}" for i in range(4)] + ["ds_read_b32 v28, v5"],
                  list(range(24, 29)), 29, lds=True)
        A("v_add_f32 v24, v24, v25")
        A("v_add_f32 v26, v26, v27")
        A("v_add_f32 v28, v24, v26")
        self.quad_x4(28)
        A("s_mov_b32 exec_lo, 0x11111111")
        A("s_mov_b32 exec_hi, 0x11111111")
        A(f"buffer_store_dwordx4 v[28:31], v14, {WS}, {T[13]} offen sc1")
        A("s_mov_b64 exec, -1")
        self.lds_set_w(F_GO, 12, 13)
        self.stamp(5)
        A.label("B_post")
        if self.o["dry"] & 4:
            A(f"s_cmp_lg_u32 {sW}, 0")
            A("s_cbranch_scc1 TB_back")
            A(f"s_cmp_lt_u32 {sJ}, {self.o['dj']}")
            A("s_cbranch_scc1 TB_back")
            A(f"s_mov_b32 {T[14]}, 0")
            self.mask(MA, 0)
            A(f"s_mov_b64 {FULL}, 0")
            A("s_mov_b64 exec, 0")
            A("s_branch TB_body")
            A.label("TB_back")
        if not self.o["sq"]:
            A(f"s_cmp_lg_u32 {sW}, 3")
            A("s_cbranch_scc1 B_noq")
            self.qp()
        A.label("B_noq")
        self.lds_wait(F_JF, 1, 4, 12)
        self.lds_wait_w(F_KDONE, 4, 12)
        A(f"s_cmp_lg_u32 {sW}, 2")
        A("s_cbranch_scc1 B_nox2")
        self.xt()
        A.label("B_nox2")
        A(f"s_add_u32 {T[0]}, {T[8]}, {WS_MOD+96*128}")
        A(f"s_add_u32 {T[1]}, {T[8]}, {WS_MOD+128*128}")
        self.poll([f"buffer_load_dwordx4 v[16:19], v3, {WS}, {T[0]} offen sc1",
                   f"buffer_load_dwordx4 v[20:23], v3, {WS}, {T[1]} offen sc1"], list(range(16, 24)), 5)
        self.prep_mod(16, 20, 136, 144)
        self.get_mode(4, 12)
        self.stamp(6)
        self.lane_addr(10, 4, [(4, 2, 3), (2, 2, 0)])
        A("v_mul_u32_u24 v10, 0xe00, v10")
        self.lane_addr(11, 4, [(0, 2, 4)])
        self.lane_addr(5, 4, [(4, 1, 5)])
        A("v_xor_b32 v11, v11, v5")
        A("v_add_u32 v10, v10, v11")
        self.lane_addr(7, 4, [(2, 4, 6), (4, 1, 5), (0, 2, 3)])
        A(f"v_add_u32 v7, {T[9]}, v7")
        A("v_xor_b32 v11, 32, v7")
        A(f"s_mul_i32 {T[1]}, {sW}, {128*3584}")
        A(f"s_mul_i32 {T[2]}, {sX}, 448")
        A(f"s_add_u32 {T[1]}, {T[1]}, {T[2]}")
        A(f"s_lshr_b32 {T[3]}, {sJ}, 1")
        A(f"s_lshl_b32 {T[2]}, {T[3]}, 6")
        A(f"s_add_u32 {T[12]}, {T[1]}, {T[2]}")
        A(f"s_lshl_b32 {T[13]}, {T[3]}, 8")
        A(f"s_and_b32 {T[14]}, {sJ}, 1")
        A(f"s_lshl_b32 {T[2]}, {T[14]}, 11")
        A(f"s_add_u32 {T[13]}, {T[13]}, {T[2]}")
        A(f"s_add_u32 {T[13]}, {T[13]}, {sG}")
        A(f"s_add_u32 {T[13]}, {T[13]}, {G_GL:#x}")
        for i in range(4):
            A(f"s_lshl_b32 {T[4+i]}, {T[4+i]}, 2")
            A(f"s_add_u32 {T[4+i]}, {T[4+i]}, {sG}")
            A(f"s_add_u32 {T[4+i]}, {T[4+i]}, {G_X1:#x}")
        A(f"s_lshl_b32 {T[10]}, {sW}, 9")
        A(f"v_add_u32 v9, {T[10]}, v6")
        self.mask(MA, 0x55555555)
        self.op_addr(T[15])
        self.dry_begin("TB")
        self.get_scl(24)
        self.stamp(12)
        self.op_pub(T[15])
        self.stamp(7)
        A(f"s_cmp_ge_u32 {sJ}, 14")
        A("s_cbranch_scc1 L_fin")
        if self.o["gw"]:
            A("s_waitcnt vmcnt(0)")
        for kk in range(4):
            for hf in range(2):
                A(f"s_add_u32 {T[1]}, {T[12]}, {(32*kk+4*hf)*3584:#x}")
                self.dma(10, SB_, T[1], T[9], W0 + (2 * kk + hf) * 1024)
        A("s_waitcnt vmcnt(0)")
        for c in range(2):
            for kk in range(4):
                for hf in range(2):
                    A(f"ds_read_b64_tr_b16 {v(64+16*c+4*kk+2*hf,2)}, v{11 if c else 7} offset:{W0+(2*kk+hf)*1024}")
            A("s_waitcnt lgkmcnt(0)")
        self.stamp(8)
        A.label("TB_body")
        if self.o["gate"]:
            A(f"s_lshl_b32 {T[0]}, {sJ}, 8")
            A(f"s_add_u32 {T[0]}, {T[0]}, {sG}")
            A(f"s_add_u32 {T[0]}, {T[0]}, {G_AP:#x}")
            A("v_lshlrev_b32 v4, 13, v1")
            A(f"s_and_b64 exec, {FULL}, 3")
            self.poll([f"buffer_load_dword v16, v4, {WS}, {T[0]} offen sc1"], [16], 5)
        if self.o["xm"]:
            E = [f"s[{36+2*i}:{37+2*i}]" for i in range(4)]
            A(f"s_mov_b32 {sCNT}, {2*LIM_G}")
            A.label("X1_r")
            A(f"s_lshr_b32 {sCNT}, {sCNT}, 1")
            for i in range(4):
                A(f"s_mov_b64 {E[i]}, {FULL}")
            if self.o["xm"] == 2:
                for i in range(4):
                    A(f"buffer_load_dwordx4 {v(16+4*i,4)}, v3, {WS}, {T[4+i]} offen sc1")
                self.delay(4)
            A.label("X1_l")
            for i in range(4):
                A(f"s_mov_b64 exec, {E[i]}")
                A(f"buffer_load_dwordx4 {v(16+4*i,4)}, v3, {WS}, {T[4+i]} offen sc1")
            A(f"s_mov_b64 exec, {FULL}")
            A(f"s_sub_u32 {sCNT}, {sCNT}, 1")
            A(f"s_cselect_b64 {MB_}, 0, -1")
            A(f"s_waitcnt vmcnt({4 if self.o['xm'] == 2 else 0})")
            for i in range(4):
                A(f"v_cmp_eq_u32 {E[i]}, -1, v{16+4*i}")
            A(f"s_or_b64 vcc, {E[0]}, {E[1]}")
            A(f"s_or_b64 {MC}, {E[2]}, {E[3]}")
            A(f"s_or_b64 vcc, vcc, {MC}")
            A(f"s_and_b64 vcc, vcc, {MB_}")
            A("s_cbranch_scc1 X1_l")
            self.stamp(9)
            self.ln(16, 160, 32, 152, 128, nanchk=True)
            A(f"s_and_b64 vcc, vcc, {MB_}")
            A("s_cbranch_scc1 X1_r")
        else:
            self.tpoll([f"buffer_load_dwordx4 {v(16+4*i,4)}, v3, {WS}, {T[4+i]} offen sc1" for i in range(4)],
                       list(range(16, 32)), 5)
            self.stamp(9)
            self.ln(16, 160, 32, 152, 128)
        A("s_waitcnt vmcnt(0)")
        self.combine(128, 144, 136, 16)
        for c in range(2):
            for kk in range(4):
                A(f"v_mfma_f32_16x16x32_bf16 {v(32+16*c+4*kk,4)}, v[16:19], {v(64+16*c+4*kk,4)}, 0")
        self.selreduce([32, 36, 40, 44], 24)
        self.selreduce([48, 52, 56, 60], 25)
        A(f"s_cmp_eq_u32 {sW}, 0")
        A("s_cbranch_scc1 B_g0")
        A(f"ds_write_b64 v9, v[24:25] offset:{RED_GU}")
        A("s_branch TB_end")
        A.label("B_g0")
        self.stamp(10)
        self.poll([f"ds_read_b64 {v(24+2*i,2)}, v6 offset:{RED_GU+512*i}" for i in (1, 2, 3)], list(range(26, 32)), 5,
                  lds=True)
        A("v_pk_add_f32 v[24:25], v[24:25], v[26:27]")
        A("v_pk_add_f32 v[28:29], v[28:29], v[30:31]")
        A("v_pk_add_f32 v[24:25], v[24:25], v[28:29]")
        A(f"s_cmp_lg_u32 {T[14]}, 0")
        A("s_cbranch_scc1 B_up")
        k0 = 0.7978845608028654
        for r in (24, 25):
            self.rbf(r, r)
        for r in (24, 25):
            A(f"v_mul_f32 v{r+2}, v{r}, v{r}")
        for r in (24, 25):
            A(f"v_mul_f32 v{r+2}, {f32(-2*k0*0.044715*LOG2E)}, v{r+2}")
        for r in (24, 25):
            A(f"v_add_f32 v{r+2}, {f32(-2*k0*LOG2E)}, v{r+2}")
        for r in (24, 25):
            A(f"v_mul_f32 v{r+2}, v{r+2}, v{r}")
        for r in (24, 25):
            A(f"v_exp_f32 v{r+2}, v{r+2}")
        for r in (24, 25):
            A(f"v_add_f32 v{r+2}, 1.0, v{r+2}")
        for r in (24, 25):
            A(f"v_rcp_f32 v{r+2}, v{r+2}")
        for r in (24, 25):
            A(f"v_mul_f32 v{r}, v{r}, v{r+2}")
        A.label("B_up")
        A("v_mov_b32_dpp v26, v24 quad_perm:[1,0,3,2] row_mask:0xf bank_mask:0xf")
        A("v_mov_b32_dpp v27, v25 quad_perm:[1,0,3,2] row_mask:0xf bank_mask:0xf")
        A("v_cvt_pk_bf16_f32 v24, v24, v26")
        A("v_cvt_pk_bf16_f32 v25, v25, v27")
        A(f"s_and_b64 exec, {FULL}, {MA}")
        self.pub([f"buffer_store_dword v24, v8, {WS}, {T[13]} offen",
                  f"buffer_store_dword v25, v8, {WS}, {T[13]} offen offset:128"])
        self.stamp(11)
        self.dry_end("TB")

    def set_go(self):
        A = self.A
        self.lds_set_w(F_GI, 12, 13)
        l = A.newlabel("NG")
        A(f"s_cmp_lt_u32 {sJ}, {0 if self.o['so'] else self.o['goq']}")
        A(f"s_cbranch_scc1 {l}")
        A(f"ds_write_b32 v12, v13 offset:{0x10000+F_GO-F_GI}" if False else f"v_subrev_u32 v12, {F_GI-F_GO}, v12")
        A("ds_write_b32 v12, v13")
        A.label(l)
        A("s_nop 0")

    def gu_srd(self):
        A = self.A
        l1, l2 = A.newlabel("GU"), A.newlabel("GU")
        A(f"s_bitcmp1_b32 {sJ}, 0")
        A(f"s_cbranch_scc1 {l1}")
        self.srd("SB_", "wg", 512 * 1792 * 2)
        A(f"s_branch {l2}")
        A.label(l1)
        self.srd("SB_", "wu", 512 * 1792 * 2)
        A.label(l2)
        A("s_nop 0")

    def chainA(self):
        A = self.A
        A.label("L_chainA")
        A(f"s_sub_u32 {T[10]}, {sJ}, 16")
        if self.o["t1"]:
            self.lane_addr(10, 4, [(3, 2, 17), (5, 1, 10)])
        else:
            A("v_lshlrev_b32 v10, 10, v10")
        A("v_add_u32 v10, v10, v11")
        A("v_xor_b32 v11, 64, v10")
        A(f"s_lshl_b32 {T[1]}, {sX}, 5")
        A(f"s_lshr_b32 {T[12]}, {T[10]}, 3")
        A(f"s_lshl_b32 {T[2]}, {T[12]}, 2")
        A(f"s_add_u32 {T[1]}, {T[1]}, {T[2]}")
        A(f"s_add_u32 {T[1]}, {T[1]}, {sW}")
        A(f"s_lshl_b32 {T[1]}, {T[1]}, 14")
        A(f"s_and_b32 {T[13]}, {T[10]}, 7")
        A(f"s_lshl_b32 {T[2]}, {T[13]}, 7")
        A(f"s_add_u32 {T[1]}, {T[1]}, {T[2]}")
        A(f"s_lshl_b32 {T[2]}, {sW}, 13")
        A("s_waitcnt lgkmcnt(0)")
        self.srd("SA_", "wo", 4096 * 512 * 2)
        WD = self.o["wdepth"]
        n = 0
        for ki in range(2):
            for g in range(4):
                if n == min(WD, 7):
                    A("s_barrier")
                    self.srd("SB_", "wd", 512 * 1792 * 2)
                    self.srd("WS", "ws", WS_SIZE)
                    self.srd("SX_", "x", 4096)
                    self.srd("SOUT", "out", 4096)
                    self.stamp_init()
                if n >= WD:
                    A(f"s_waitcnt vmcnt({WD-1})")
                A(f"s_add_u32 {T[3]}, {T[1]}, {((2 if self.o['t1'] else 128)*g+8*ki)*1024:#x}")
                self.dma(10 + (g & 1), SA_, T[3], T[2], W0 + ki * 4096 + g * 1024)
                n += 1
        self.lane_addr(10, 4, [(4, 2, 13), (2, 2, 10), (0, 2, 4)])
        self.lane_addr(5, 4, [(4, 1, 5)])
        A("v_xor_b32 v10, v10, v5")
        A(f"s_mul_i32 {T[1]}, {sX}, {224*1024}")
        A(f"s_lshl_b32 {T[3]}, {T[10]}, 6")
        A(f"s_add_u32 {T[1]}, {T[1]}, {T[3]}")
        A(f"s_lshr_b32 {T[3]}, {sW}, 1")
        A(f"s_lshl_b32 {T[3]}, {T[3]}, 15")
        A(f"s_add_u32 {T[1]}, {T[1]}, {T[3]}")
        A(f"s_and_b32 {T[0]}, {sW}, 1")
        A(f"s_lshl_b32 {T[3]}, {T[0]}, 12")
        A(f"s_add_u32 {T[1]}, {T[1]}, {T[3]}")
        A(f"s_lshl_b32 {T[2]}, {sW}, 10")
        for i in range(0 if self.o["hk"] == 4 else 4):
            if i == 3:
                A(f"s_cmp_ge_u32 {sW}, 2")
                A("s_cbranch_scc1 A_dn3")
            A(f"s_waitcnt vmcnt({max(WD-2-i, 1)})")
            self.dma(10, SB_, T[1], T[2], WDN + i * 4096)
            if i < 3:
                A(f"s_add_u32 {T[1]}, {T[1]}, {64*1024}")
        A.label("A_dn3")
        self.lds_set_w(F_GO, 12, 13)
        A(f"s_lshl_b32 {T[4]}, {T[10]}, 1")
        A(f"s_add_u32 {T[4]}, {T[4]}, {T[0]}")
        A(f"s_lshl_b32 {T[5]}, {T[4]}, 7")
        A(f"s_lshl_b32 {T[6]}, {T[4]}, 8")
        A(f"s_lshl_b32 {T[7]}, {T[4]}, 5")
        if self.o["nl"]:
            for i in range(4):
                A(f"s_add_u32 {T[16+i]}, {T[6]}, {WS_G+0x8000+(i&1)*0x40000+(i>>1)*0x4000:#x}")
            A(f"s_and_b32 {T[3]}, {T[6]}, 0x700")
            A(f"s_lshr_b32 {T[6]}, {T[4]}, 4")
            A(f"s_lshl_b32 {T[6]}, {T[6]}, 11")
            A(f"s_add_u32 {T[6]}, {T[6]}, {T[3]}")
            for i in range(2):
                A(f"s_add_u32 {T[20+i]}, {T[6]}, {WS_G+0x5000+i*0x40000:#x}")
            A(f"s_add_u32 {T[22]}, {sG}, {T[5]}")
            A(f"s_add_u32 {T[22]}, {T[22]}, {G_X1:#x}")
            A(f"s_add_u32 {T[23]}, {sG}, {T[6]}")
            A(f"s_add_u32 {T[23]}, {T[23]}, 0x5000")
            A(f"s_lshl_b32 {T[24]}, {T[13]}, 2")
            A(f"s_add_u32 {T[24]}, {T[24]}, {sW}")
            A(f"s_lshl_b32 {T[24]}, {T[24]}, 8")
            A(f"s_lshl_b32 {T[3]}, {T[12]}, 14")
            A(f"s_add_u32 {T[24]}, {T[24]}, {T[3]}")
            A(f"s_add_u32 {T[24]}, {T[24]}, {sG}")
            A(f"s_add_u32 {T[24]}, {T[24]}, 0x8000")
            self.lane_addr(160, 4, [(2, 4, 4), (0, 1, 13)])
        else:
            for i in range(4):
                A(f"s_add_u32 {T[16+i]}, {T[6]}, {WS_G+G_AP+(i&1)*0x40000+(i>>1)*0x2000:#x}")
            if self.o["apc"]:
                A(f"s_lshl_b32 {T[3]}, {sX}, 17")
                A(f"s_add_u32 {T[3]}, {T[3]}, {T[6]}")
                for i in range(4):
                    A(f"s_add_u32 {T[16+i]}, {T[3]}, {WS_APC+(i&1)*0x10000+(i>>1)*0x2000:#x}")
            if self.o["optp"]:
                A(f"s_and_b32 {T[3]}, {T[6]}, 0x700")
                A(f"s_lshr_b32 {T[6]}, {T[4]}, 4")
                A(f"s_lshl_b32 {T[6]}, {T[6]}, 11")
                A(f"s_add_u32 {T[6]}, {T[6]}, {T[3]}")
                A(f"s_bitcmp{self.o['optp']-1}_b32 {T[4]}, 3")
                A(f"s_cselect_b32 {T[3]}, 0x5000, 0")
                A(f"s_sub_u32 {T[6]}, {T[6]}, {T[3]}")
            for i in range(2):
                A(f"s_add_u32 {T[20+i]}, {T[6]}, {WS_G+G_OPT+i*0x40000:#x}")
            A(f"s_add_u32 {T[22]}, {sG}, {T[5]}")
            A(f"s_add_u32 {T[22]}, {T[22]}, {G_X1:#x}")
            A(f"s_add_u32 {T[23]}, {sG}, {T[6]}")
            A(f"s_add_u32 {T[23]}, {T[23]}, {G_OPT:#x}")
            A(f"s_lshl_b32 {T[24]}, {T[13]}, 2")
            A(f"s_add_u32 {T[24]}, {T[24]}, {sW}")
            A(f"s_lshl_b32 {T[24]}, {T[24]}, 8")
            A(f"s_lshl_b32 {T[3]}, {T[12]}, 13")
            A(f"s_add_u32 {T[24]}, {T[24]}, {T[3]}")
            if self.o["apc"]:
                A(f"s_lshl_b32 {T[3]}, {sX}, 14")
                A(f"s_add_u32 {T[24]}, {T[24]}, {T[3]}")
                A(f"s_add_u32 {T[24]}, {T[24]}, {WS_APC:#x}")
                A(f"s_add_u32 {T[27]}, {T[24]}, 0x80000")
                self.lane_addr(160, 4, [(2, 4, 4), (0, 2, 17)])
                self.lane_addr(161, 4, [(4, 2, 14), (0, 4, 4)])
            else:
                A(f"s_add_u32 {T[24]}, {T[24]}, {sG}")
                A(f"s_add_u32 {T[24]}, {T[24]}, {G_AP:#x}")
        A(f"s_lshl_b32 {T[25]}, {T[12]}, 9")
        A(f"s_add_u32 {T[25]}, {T[25]}, {sG}")
        A(f"s_add_u32 {T[25]}, {T[25]}, {G_O:#x}")
        A(f"s_add_u32 {T[26]}, {sG}, {G_GL:#x}")
        if self.o["ap"]:
            self.lane_addr(131, 4, [(4, 2, 10), (0, 3, 2), (3, 1, 1)])
            self.lane_addr(132, 4, [(4, 2, 5), (0, 3, 2), (3, 1, 1)])
            self.lane_addr(11, 4, [(3, 3, 16), (0, 3, 3)])
            for r in range(136, 160, 2):
                A(f"v_mov_b64 {v(r,2)}, -1")
        else:
            self.lane_addr(131, 4, [(2, 2, 10), (0, 2, 3), (4, 2, 1)])
            self.lane_addr(132, 4, [(0, 4, 3), (4, 2, 1)])
            self.lane_addr(11, 4, [(4, 2, 16), (0, 4, 4)])
        self.lane_addr(133, 4, [(4, 2, 4), (0, 3, 1)])
        A("v_bfe_u32 v4, v1, 2, 2")
        A("v_min_u32 v4, 2, v4")
        self.lane_addr(134, 5, [(5, 1, 7), (0, 2, 5), (4, 1, 4)])
        A("v_lshl_add_u32 v134, v4, 8, v134")
        A("s_waitcnt vmcnt(0)")
        self.lds_set_w(F_WD, 4, 5)
        self.stamp(1)
        if self.o["so"] == 2:
            A("s_branch L_fin")
        self.lds_wait(F_WD, 4, 4, 12)
        A(f"s_lshl_b32 {T[1]}, {sW}, 5")
        A(f"v_xor_b32 v7, {T[1]}, v7")
        for o in range(8):
            for hf in range(2):
                A(f"ds_read_b64_tr_b16 {v(64+4*o+2*hf,2)}, v7 offset:{W0+o*4096+hf*512}")
            if o == 3:
                A("s_waitcnt lgkmcnt(0)")
        A("s_waitcnt lgkmcnt(0)")
        self.lane_addr(7, 4, [(2, 4, 6), (4, 1, 5), (0, 2, 3)])
        A(f"s_lshl_b32 {T[1]}, {T[0]}, 5")
        A(f"v_xor_b32 v7, {T[1]}, v7")
        A(f"v_add_u32 v7, {WDN:#x}, v7")
        for kb in range(7):
            for hf in range(2):
                A(f"ds_read_b64_tr_b16 {v(96+4*kb+2*hf,2)}, v7 offset:{(2*kb+hf)*1024}")
        A("s_waitcnt lgkmcnt(0)")
        self.lds_set_w(F_WF, 12, 13)
        A(f"s_cmp_lg_u32 {sW}, 3")
        A("s_cbranch_scc1 A_noq")
        if not self.o["sq"]:
            self.qp()
        A("s_branch A_now")
        A.label("A_noq")
        self.lds_wait(F_JF, 1, 4, 12)
        self.lds_wait_w(F_KDONE, 4, 12)
        A(f"s_cmp_lg_u32 {sW}, 2")
        A("s_cbranch_scc1 A_g")
        self.xt(self.o["pol"] == 3)
        A("s_branch A_now")
        A.label("A_g")
        A(f"buffer_load_ushort v128, v131, {SX_}, {T[7]} offen")
        A(f"s_add_u32 {T[0]}, {T[5]}, {WS_MOD+64*128}")
        A(f"s_add_u32 {T[1]}, {T[5]}, {WS_MOD+160*128}")
        self.poll([f"buffer_load_ushort v129, v132, {WS}, {T[0]} offen sc1",
                   f"buffer_load_ushort v130, v132, {WS}, {T[1]} offen sc1"], [129, 130], 5, sent="0xffff")
        for r in (128, 129, 130):
            A(f"v_lshlrev_b32 v{r}, 16, v{r}")
        A.label("A_now")
        self.get_mode(4, 12)
        if self.o["nl"]:
            self.pol_fix()
        if self.o["fa"]:
            A(f"s_lshr_b32 {T[23]}, {T[4]}, 4")
            A(f"s_lshl_b32 {T[23]}, {T[23]}, 16")
            A(f"s_and_b32 {T[3]}, {T[4]}, 7")
            A(f"s_lshl_b32 {T[3]}, {T[3]}, 9")
            A(f"s_add_u32 {T[23]}, {T[23]}, {T[3]}")
            A(f"s_and_b32 {T[3]}, {T[4]}, 8")
            A(f"s_lshl_b32 {T[3]}, {T[3]}, 10")
            A(f"s_add_u32 {T[23]}, {T[23]}, {T[3]}")
            A(f"s_add_u32 {T[23]}, {T[23]}, {WS_G+0x5000:#x}")
            A(f"s_and_b32 {T[3]}, {sW}, 1")
            A(f"s_lshl_b32 {T[3]}, {T[3]}, 8")
            A(f"v_lshl_add_u32 v161, v132, 1, {T[3]}")
            A(f"v_add_u32 v162, {T[3]}, v9")
            self.lane_addr(163, 4, [(4, 2, 10), (0, 4, 1)])
        self.lane_addr(10, 4, [(3, 3, 11), (0, 3, 4)])
        self.lane_addr(14, 4, [(3, 3, 4)])
        A(f"s_lshl_b32 {T[0]}, {sX}, 2")
        A(f"s_add_u32 {T[0]}, {T[0]}, {sB}")
        A(f"s_lshl_b32 {T[0]}, {T[0]}, 14")
        A(f"s_sub_u32 {T[9]}, {sS}, 4")
        A(f"s_lshl_b32 {T[1]}, {T[9]}, 9")
        A(f"s_add_u32 {T[0]}, {T[0]}, {T[1]}")
        A(f"s_lshl_b32 {T[1]}, {sW}, 7")
        A(f"s_add_u32 {T[0]}, {T[0]}, {T[1]}")
        A(f"s_add_u32 {T[0]}, {T[0]}, {WS_OP:#x}")
        self.op_addr(T[15])
        A(f"s_lshl_b32 {T[8]}, {sB}, 10")
        A(f"s_lshl_b32 {T[9]}, {T[9]}, 8")
        A(f"s_add_u32 {T[8]}, {T[8]}, {T[9]}")
        A(f"s_lshl_b32 {T[9]}, {sW}, 6")
        A(f"s_add_u32 {T[8]}, {T[8]}, {T[9]}")
        A(f"s_add_u32 {T[8]}, {T[8]}, {sG}")
        A(f"s_add_u32 {T[8]}, {T[8]}, {G_O:#x}")
        if self.o["t1"]:
            A(f"s_lshl_b32 {T[0]}, {sX}, 2")
            A(f"s_add_u32 {T[0]}, {T[0]}, {sW}")
            A(f"s_lshl_b32 {T[0]}, {T[0]}, 4")
            A(f"s_add_u32 {T[0]}, {T[0]}, {T[12]}")
            A(f"s_lshl_b32 {T[0]}, {T[0]}, 10")
            A(f"s_add_u32 {T[0]}, {T[0]}, {WS_OP:#x}")
            A(f"s_add_u32 {T[1]}, {T[0]}, 0x1000")
            A(f"s_add_u32 {T[8]}, {T[0]}, 0x2000")
            A(f"s_add_u32 {T[9]}, {T[0]}, 0x3000")
            A("v_lshlrev_b32 v10, 4, v1")
            A(f"s_lshl_b32 {T[3]}, {sW}, 7")
            A(f"v_mov_b32 v14, {T[3]}")
            A(f"s_mul_i32 {T[3]}, {sW}, 528")
            A(f"v_add_u32 v133, {T[3]}, v6")
            self.lane_addr(2, 4, [(0, 2, 9), (0, 2, 4), (2, 2, 6), (4, 2, 4)])
        self.mask(MA, 0x00550055)
        self.mask(MB_, 0x11111111)
        self.mask(MC, 0x00ff00ff if self.o["ap"] else 0x0000ffff)
        self.stamp(5)
        self.dry_begin("TA")
        self.get_scl(24)
        self.stamp(12)
        A.label("TA_body")
        if self.o["t1"]:
            for i in range(8):
                A(f"s_mov_b64 s[{36+2*i}:{37+2*i}], {FULL}")
        self.op_pub(T[15])
        self.stamp(6)
        AO = 56 if self.o["opk"] else 16
        if self.o["t1"]:
            self.poll([f"ds_read_b128 {v(32+4*i,4)}, v14 offset:{MLW4+16*i}" for i in range(8)], [32, 63], 5, lds=True)
            D = [16, 20, 24, 28, 136, 140, 144, 148]
            E = [f"s[{36+2*i}:{37+2*i}]" for i in range(8)]
            L = A.newlabel("OPL")
            A(f"s_mov_b32 {sCNT}, {LIM_G}")
            A.label(L)
            for i in range(8):
                A(f"s_mov_b64 exec, {E[i]}")
                A(f"buffer_load_dwordx4 {v(D[i],4)}, v10, {WS}, {(T[0], T[1], T[8], T[9])[i>>1]} offen offset:{2048*(i&1)} sc1")
            A(f"s_mov_b64 exec, {FULL}")
            A(f"s_sub_u32 {sCNT}, {sCNT}, 1")
            A("s_cselect_b32 s95, 0, -1")
            A("s_waitcnt vmcnt(0)")
            for i in range(8):
                A(f"v_cmp_u_f32 {E[i]}, v{D[i]}, v{D[i]+2}")
            if self.o["t1"] == 2:
                ld = lambda i: f"buffer_load_dwordx4 {v(D[i],4)}, v10, {WS}, {(T[0], T[1], T[8], T[9])[i>>1]} offen offset:{2048*(i&1)} sc1"
                A("s_mov_b32 s94, 0")
                for i in range(8):
                    A(f"s_cmp_lg_u64 {E[i]}, 0")
                    A("s_addc_u32 s94, s94, s94")
                A("s_and_b32 s94, s94, s95")
                A("s_cbranch_scc0 OP_dn")
                A(f"s_bcnt1_i32_b32 {T[3]}, s94")
                A(f"s_cmp_gt_u32 {T[3]}, 1")
                A(f"s_cbranch_scc1 {L}")
                for i in range(1, 8):
                    A(f"s_bitcmp1_b32 s94, {7-i}")
                    A(f"s_cbranch_scc1 OP_t{i}")
                for i in range(8):
                    A.label(f"OP_t{i}")
                    if self.o["opk"]:
                        A(ld(i))
                        self.delay(self.o["opk"])
                        A.label(f"OP_u{i}")
                    A(ld(i))
                    A(f"s_waitcnt vmcnt({1 if self.o['opk'] else 0})")
                    A(f"v_cmp_u_f32 vcc, v{D[i]}, v{D[i]+2}")
                    A("s_cbranch_vccz OP_dn")
                    A("s_mov_b64 exec, vcc")
                    A(f"s_sub_u32 {sCNT}, {sCNT}, 1")
                    A(f"s_cbranch_scc0 OP_{'u' if self.o['opk'] else 't'}{i}")
                    if i < 7:
                        A("s_branch OP_dn")
                A.label("OP_dn")
                A(f"s_mov_b64 exec, {FULL}")
                A(f"v_pk_mul_f32 v[152:153], {v(D[0],2)}, v[32:33]")
                A(f"v_pk_mul_f32 v[154:155], {v(D[0]+2,2)}, v[34:35]")
            else:
                A(f"v_pk_mul_f32 v[152:153], {v(D[0],2)}, v[32:33]")
                A(f"v_pk_mul_f32 v[154:155], {v(D[0]+2,2)}, v[34:35]")
                A(f"s_or_b64 vcc, {E[0]}, {E[1]}")
                for i in range(2, 8):
                    A(f"s_or_b64 vcc, vcc, {E[i]}")
                A("s_or_b32 s94, vcc_lo, vcc_hi")
                A("s_and_b32 s94, s94, s95")
                A(f"s_cbranch_scc1 {L}")
            self.stamp(7)
            for i in range(1, 8):
                A(f"v_pk_fma_f32 v[152:153], {v(D[i],2)}, {v(32+4*i,2)}, v[152:153]")
                A(f"v_pk_fma_f32 v[154:155], {v(D[i]+2,2)}, {v(34+4*i,2)}, v[154:155]")
            A("v_cvt_pk_bf16_f32 v152, v152, v153")
            A("v_cvt_pk_bf16_f32 v153, v154, v155")
            A(f"ds_write_b64 v133, v[152:153] offset:{OL}")
            self.poll([f"ds_read_b128 {v(AO+4*t,4)}, v2 offset:{OL+256*t}" for t in range(2)], list(range(AO, AO+8, 2)), 5, lds=True)
        else:
            self.poll([f"ds_read_b128 v[24:27], v14 offset:{MLW}"], list(range(24, 28)), 5, lds=True)
            self.tpoll([f"buffer_load_dwordx4 v[20:23], v10, {WS}, {T[0]} offen sc1"], list(range(20, 24)), 5)
            self.stamp(7)
            A("v_pk_mul_f32 v[28:29], v[20:21], v[24:25]")
            A("v_pk_mul_f32 v[30:31], v[22:23], v[26:27]")
            self.treduce(28, 24)
            A("v_add_f32_dpp v24, v24, v24 row_ror:8 row_mask:0xf bank_mask:0xf")
            self.pack_dw(24, 24, 25)
            A(f"s_and_b64 exec, {FULL}, {MA}")
            self.pub([f"buffer_store_dword v24, v133, {WS}, {T[8]} offen"])
            A(f"s_mov_b64 exec, {FULL}")
            self.tpoll([f"buffer_load_dwordx4 {v(16+4*t,4)}, v2, {WS}, {T[25]} offen offset:{256*t} sc1" for t in range(2)],
                       list(range(16, 24)), 5)
        self.stamp(8)
        for t in range(2):
            for kk in range(4):
                A(f"v_mfma_f32_16x16x32_bf16 {v(32+4*kk,4)}, {v(AO+4*t,4)}, {v(64+16*t+4*kk,4)}, " +
                  ("0" if t == 0 else v(32 + 4 * kk, 4)))
        if self.o["nl"]:
            self.selreduce([32, 36, 40, 44], 52)
            for i in range(4):
                A(f"v_mov_b32_dpp v{48+i}, v52 quad_perm:[{i},{i},{i},{i}] row_mask:0xf bank_mask:0xf")
            A("s_and_b32 exec_lo, s92, 0x33333333")
            A("s_and_b32 exec_hi, s93, 0x33333333")
            A(f"buffer_store_dwordx4 v[48:51], v160, {WS}, {T[24]} offen sc1")
            A(f"s_mov_b64 exec, {FULL}")
        elif self.o["apc"]:
            self.selreduce([32, 36, 40, 44], 52)
            for i in range(4):
                A(f"v_mov_b32_dpp v{48+i}, v52 quad_perm:[{i},{i},{i},{i}] row_mask:0xf bank_mask:0xf")
            A(f"buffer_store_dwordx4 v[48:51], v160, {WS}, {T[24]} offen sc1")
            A(f"buffer_store_dwordx4 v[48:51], v160, {WS}, {T[27]} offen sc1")
        else:
            self.selreduce([32, 36, 40, 44], 48)
            self.quad_x4(48)
            A(f"s_and_b64 exec, {FULL}, {MB_}")
            A(f"buffer_store_dwordx4 v[48:51], v9, {WS}, {T[24]} offen sc1")
            A(f"s_mov_b64 exec, {FULL}")
        self.stamp(9)
        A(f"s_cmp_ge_u32 {sW}, 2")
        A("s_cbranch_scc1 A_down")
        if self.o["ap"]:
            self.xsum3([T[16], T[18]], 136, 40, self.o["ap"] & 1, self.o["aph"])
        else:
            self.xsum(T[16:20], 40, 161 if self.o['apc'] else 11)
        self.stamp(10)
        self.rbf(40, 40)
        A("v_mul_f32 v40, v40, v129")
        self.rbf(40, 40)
        A("v_add_f32 v40, v40, v128")
        if self.o["ap"]:
            self.rbf(135, 40)
            A("v_mov_b32_dpp v41, v40 row_ror:8 row_mask:0xf bank_mask:0xf")
        else:
            A("v_mov_b32 v41, v40")
            self.rbf(135, 40)
            A("v_permlane16_swap_b32 v40, v41")
        A("v_cvt_pk_bf16_f32 v40, v40, v41")
        A(f"s_and_b64 exec, {FULL}, {MC}")
        self.pub([f"buffer_store_dword v40, v132, {WS}, {T[22]} offen"])
        A(f"s_mov_b64 exec, {FULL}")
        if self.o["gate"]:
            A(f"v_mov_b32 v4, {F_X1:#x}")
            A("ds_write_b32 v4, v4")
        if self.o["fa"]:
            A(f"ds_write_b32 v161, v135 offset:{SM+0xC00}")
            A(f"ds_write_b32 v161, v130 offset:{SM+0xE00}")
            A("s_branch TA_end")
        A(f"s_cmp_lg_u32 {T[13]}, {sX}")
        A("s_cbranch_scc1 TA_end")
        if self.o["gate"]:
            self.lds_wait(F_ACT, 1, 4, 12)
        if self.o["ap"]:
            self.xsum3([T[20]], 152, 40, self.o["ap"] & 2, self.o["apf"])
        else:
            self.xsum(T[20:22], 40)
        self.stamp(11)
        self.rbf(40, 40)
        A("v_mul_f32 v40, v40, v130")
        self.rbf(40, 40)
        A("v_add_f32 v40, v40, v135")
        self.rbf(40, 40)
        A(f"buffer_store_short_d16_hi v40, v131, {SOUT}, {T[7]} offen")
        A("s_branch TA_end")
        A.label("A_down")
        if self.o["fa"]:
            self.mask(MC, 0, 0x41780000)
            self.mask(MB_, 1, 0x35B80000)
            self.poll([f"ds_read_b32 v135, v162 offset:{SM+0xC00}", f"ds_read_b32 v130, v162 offset:{SM+0xE00}"],
                      [135, 130], 5, lds=True)
        if self.o["gate"]:
            self.lds_wait(F_X1, 1, 4, 12)
            A(f"v_mov_b32 v4, {F_ACT:#x}")
        self.poll([f"buffer_load_dwordx4 v[16:19], v3, {WS}, {T[26]} offen sc1",
                    f"buffer_load_dwordx4 v[20:23], v134, {WS}, {T[26]} offen offset:1024 sc1",
                    f"buffer_load_dwordx4 v[24:27], v3, {WS}, {T[26]} offen offset:2048 sc1",
                    f"buffer_load_dwordx4 v[28:31], v134, {WS}, {T[26]} offen offset:3072 sc1"], list(range(16, 32)), 5, k=self.o["pka"], gap=self.o["pga"])
        if self.o["gate"]:
            A("ds_write_b32 v4, v4")
        self.stamp(10)
        for t in range(2):
            self.unpack(16 + 4 * t, 136)
            self.unpack(24 + 4 * t, 144)
            for p in range(4):
                A(f"v_pk_mul_f32 {v(136+2*p,2)}, {v(136+2*p,2)}, {v(144+2*p,2)}")
            for p in range(4):
                A(f"v_cvt_pk_bf16_f32 v{152+4*t+p}, v{136+2*p}, v{137+2*p}")
            for kk in range(4 if t == 0 else 3):
                A(f"v_mfma_f32_16x16x32_bf16 {v(32+4*kk,4)}, {v(152+4*t,4)}, {v(96+16*t+4*kk,4)}, " +
                  ("0" if t == 0 else v(32 + 4 * kk, 4)))
        self.selreduce([32, 36, 40, 44], 48)
        if self.o["fa"]:
            A("v_cvt_f64_f32 v[50:51], v48")
            A(f"v_add_f64 v[50:51], v[50:51], {MC}")
            A(f"v_lshl_add_u64 v[52:53], v[50:51], 0, {MB_}")
            A(f"buffer_atomic_add_x2 v[50:51], v6, {WS}, {T[23]} offen sc0 sc1")
            self.stamp(11)
            A("s_waitcnt vmcnt(0)")
            A("v_lshl_add_u64 v[50:51], v[50:51], 0, v[52:53]")
            A(f"v_add_f64 v[50:51], v[50:51], -{MC}")
            A("v_cvt_f32_f64 v40, v[50:51]")
            A("v_mov_b32 v41, 0x4a800000")
            A("v_cmp_gt_f32 vcc, v41, |v40|")
            self.rbf(40, 40)
            A("v_mul_f32 v40, v40, v130")
            self.rbf(40, 40)
            A("v_add_f32 v40, v40, v135")
            self.rbf(40, 40)
            A("s_mov_b64 exec, vcc")
            A(f"buffer_store_short_d16_hi v40, v163, {SOUT}, {T[7]} offen")
        else:
            self.quad_x4(48)
            A(f"s_and_b64 exec, {FULL}, {MB_}")
            A(f"buffer_store_dwordx4 v[48:51], v9, {WS}, {T[23]} offen sc1")
            self.stamp(11)
        self.dry_end("TA")

    def pol_fix(self):
        A = self.A
        if self.o["pol"] == 3:
            self.lds_wait(F_POL, 1, 4, 12)
            A(f"v_readfirstlane_b32 {T[27]}, v12")
        elif self.o["pol"]:
            self.lds_wait(F_JF, 1, 4, 12)
            A(f"v_readfirstlane_b32 {T[27]}, v12")
            A(f"s_cmp_gt_u32 {T[27]}, {96 if self.o['pol'] == 4 else 64}")
            A(f"s_cselect_b32 {T[27]}, 1, 0")
        else:
            A(f"s_mov_b32 {T[27]}, {self.o['nl']-1}")
        A(f"s_lshr_b32 {T[3]}, {sX}, 2")
        A(f"s_xor_b32 {T[3]}, {T[3]}, {T[27]}")
        A(f"s_lshl_b32 {T[3]}, {T[3]}, 13")
        for i in range(6):
            A(f"s_add_u32 {T[16+i]}, {T[16+i]}, {T[3]}")
        A(f"s_lshr_b32 {T[3]}, {T[13]}, 2")
        A(f"s_xor_b32 {T[3]}, {T[3]}, {T[27]}")
        A(f"s_lshl_b32 {T[3]}, {T[3]}, 13")
        A(f"s_add_u32 {T[23]}, {T[23]}, {T[3]}")

    def kv_base(self, isv=0):
        A = self.A
        if self.o["numa"]:
            A("s_load_dwordx2 s[84:85], s[0:1], 104")
            A("s_waitcnt lgkmcnt(0)")
            A(f"s_load_dword s86, s[84:85], {0xf0000+4*isv:#x}")
            A(f"s_and_b32 {T[0]}, {sX}, 3")
            A(f"s_and_b32 {T[1]}, {sS}, 1")
            A(f"s_lshl_b32 {T[1]}, {T[1]}, 2")
            A(f"s_add_u32 {T[0]}, {T[0]}, {T[1]}")
            A(f"s_lshl_b32 {T[1]}, {sB}, 3")
            A(f"s_add_u32 {T[0]}, {T[0]}, {T[1]}")
            A("s_waitcnt lgkmcnt(0)")
            A(f"s_lshr_b32 s86, s86, {T[0]}")
            A(f"s_lshr_b32 {T[1]}, {sX}, 2")
            A(f"s_xor_b32 s86, s86, {T[1]}")
            A(f"s_xor_b32 s86, s86, {self.o['numa']-1}")
            A("s_and_b32 s86, s86, 1")
            A("s_lshl_b32 s86, s86, 13")
            A(f"s_lshl_b32 {T[0]}, {T[0]}, 22")
            A(f"s_add_u32 {T[0]}, {T[0]}, s86")
            A(f"s_lshr_b32 {T[1]}, {sS}, 1")
            A(f"s_lshl_b32 {T[1]}, {T[1]}, 18")
        else:
            A(f"s_lshl_b32 {T[0]}, {sB}, 3")
            A(f"s_add_u32 {T[0]}, {T[0]}, {sX}")
            A(f"s_lshl_b32 {T[0]}, {T[0]}, 22")
            A(f"s_lshl_b32 {T[1]}, {sS}, 17")
        A(f"s_add_u32 {T[0]}, {T[0]}, {T[1]}")
        A(f"s_add_u32 {T[0]}, {T[0]}, 0x300000")
        A(f"s_mul_i32 {T[1]}, {sX}, {self.o['rx']}")
        A(f"s_mul_i32 {T[2]}, {sB}, {self.o['rb']}")
        A(f"s_add_u32 {T[1]}, {T[1]}, {T[2]}")
        A(f"s_mul_i32 {T[2]}, {sS}, {self.o['rs']}")
        A(f"s_add_u32 {T[1]}, {T[1]}, {T[2]}")
        A(f"s_mul_i32 {T[2]}, {sW}, {8 if self.o['blocked'] else 1}")
        A(f"s_add_u32 {T[1]}, {T[1]}, {T[2]}")

    def tile_off(self, tau):
        A = self.A
        A(f"s_add_u32 {T[2]}, {T[1]}, {tau if self.o['blocked'] else 4*tau}")
        if self.o["numa"]:
            A(f"s_and_b32 {T[3]}, {T[2]}, 30")
            A(f"s_and_b32 {T[2]}, {T[2]}, 31")
            A(f"s_add_u32 {T[2]}, {T[2]}, {T[3]}")
        else:
            A(f"s_and_b32 {T[2]}, {T[2]}, 31")
        A(f"s_lshl_b32 {T[2]}, {T[2]}, 12")
        A(f"s_add_u32 {T[2]}, {T[2]}, {T[0]}")

    def kwave(self):
        A = self.A
        D = self.o["depth"]
        KB = 40
        A.label("L_k")
        self.lane_addr(2, 4, [(1, 1, 10), (2, 2, 8), (0, 1, 6), (4, 2, 4)])
        self.kv_base()
        A("s_waitcnt lgkmcnt(0)")
        self.srd("SA_", "k", 0x8000000)
        self.srd("WS", "ws", WS_SIZE)
        self.stamp_init()
        if self.o["pol"]:
            A(f"s_cmp_ge_u32 {sJ}, 4")
            A("s_cbranch_scc1 K_np")
            A(f"s_load_dword {T[4]}, s[32:33], {WS_PR+0x4000:#x}")
            A(f"s_lshl_b32 {T[5]}, s2, 8")
            A(f"s_lshr_b32 {T[6]}, {sW}, 1")
            A(f"s_lshl_b32 {T[6]}, {T[6]}, 7")
            A(f"s_add_u32 {T[5]}, {T[5]}, {T[6]}")
            A(f"s_and_b32 {T[6]}, {sW}, 1")
            A(f"s_lshl_b32 {T[6]}, {T[6]}, 13")
            A(f"s_add_u32 {T[5]}, {T[5]}, {T[6]}")
            A(f"s_add_u32 s56, s32, {T[5]}")
            A("s_addc_u32 s57, s33, 0")
            A("s_barrier")
            A("s_waitcnt lgkmcnt(0)")
            A("s_memtime s[58:59]")
            A(f"s_load_dword {T[4]}, s[56:57], {WS_PR:#x}")
            A("s_waitcnt lgkmcnt(0)")
            A("s_memtime s[60:61]")
            if self.o["pol"] in (2, 3, 5):
                A("s_xor_b32 s56, s56, 0x2000")
                A(f"s_load_dword {T[4]}, s[56:57], {WS_PR+0x8000:#x}")
                A("s_waitcnt lgkmcnt(0)")
                A("s_memtime s[62:63]")
            A(f"s_lshl_b32 {T[5]}, {sW}, 2")
            A(f"v_mov_b32 v3, {T[5]}")
            A("s_waitcnt lgkmcnt(0)")
            if self.o["pol"] in (2, 3, 5):
                A("s_sub_u32 s62, s62, s60")
            A("s_sub_u32 s60, s60, s58")
            if self.o["pol"] in (2, 3, 5):
                if self.o["stamps"]:
                    A("s_mov_b32 s20, s60")
                    A("s_mov_b32 s22, s62")
                A(f"s_min_u32 s60, s60, {self.o['pcl']}")
                A(f"s_min_u32 s62, s62, {self.o['pcl']}")
                A("s_sub_u32 s60, s60, s62")
                A("s_add_u32 s60, s60, 0x10000")
            A("s_and_b32 s60, s60, 0xffffff")
            A("v_mov_b32 v8, s60")
            A(f"ds_write_b32 v3, v8 offset:{F_VT}")
            A("s_branch K_pd")
            A.label("K_np")
        A("s_barrier")
        A.label("K_pd")
        if self.o["g1"]:
            A(f"s_sub_u32 {T[3]}, {sJ}, 4")
            A(f"s_cmp_lt_u32 {T[3]}, 8")
            A("s_cbranch_scc0 K_nq")
            self.lds_wait_w(F_GI, 3, 8)
            A("s_setprio 3")
            self.stamp(7)
            if self.o["g17"]:
                if self.o["mx"]:
                    A(f"s_or_b32 {T[3]}, {sJ}, 1")
                    A(f"s_cmp_eq_u32 {T[3]}, 7")
                else:
                    A(f"s_cmp_eq_u32 {sJ}, 7")
                A("s_cbranch_scc1 K_vq7")
            A("s_branch K_vq")
            A.label("K_nq")
        if self.o["so"] != 1:
            self.lds_wait_w(F_GO, 3, 8)
        A("s_setprio 3")
        self.stamp(7)
        variants = [D]
        if self.o["kdb"]:
            variants = [D, self.o["kdb"], self.o["kd3"] or self.o["kdb"]]
            A(f"s_sub_u32 {T[3]}, {sJ}, {self.o['blo']}")
            A(f"s_cmp_ge_u32 {T[3]}, {self.o['bhi']-self.o['blo']}")
            A("s_cbranch_scc0 K_nv0")
            A(f"s_cmp_lt_u32 {sX}, {self.o['lxk']}")
            A("s_cbranch_scc1 K_v0")
            A.label("K_nv0")
            A(f"s_cmp_eq_u32 {sJ}, 7")
            A("s_cbranch_scc1 K_v2")
            A(f"s_and_b32 {T[3]}, s2, 0xf9")
            A(f"s_cmp_eq_u32 {T[3]}, {15*8}")
            A("s_cbranch_scc1 K_v2")
            A("s_branch K_v1")
        nv = len(variants)
        if self.o["g1"]:
            variants.append(self.o["kdq"])
            if self.o["g17"]:
                variants.append(self.o["kdq"])
        for vi, Dv in enumerate(variants):
            gq = None if vi < nv else (self.o["g1"], self.o["g2"]) if vi == nv else (self.o["g17"], self.o["g27"])
            A.label(("K_vq" if vi == nv else "K_vq7") if gq else f"K_v{vi}")
            for i in range(32):
                tau, u = i >> 2, i & 3
                if u == 0:
                    self.tile_off(tau)
                if gq and i == gq[0]:
                    self.lds_wait(F_G2, 4, 3, 8)
                if gq and i == gq[1]:
                    self.lds_wait(F_GO, 4, 3, 8)
                if i >= Dv:
                    A(f"s_waitcnt vmcnt({Dv-1})")
                A(f"buffer_load_dwordx4 {v(KB+4*i,4)}, v2, {SA_}, {T[2]} offen offset:{2048*(u>>1)+128*(u&1)} nt")
                if i == 16:
                    A(f"v_mov_b32 v3, {F_KHALF:#x}")
                    A("ds_write_b32 v3, v3")
            if vi < len(variants) - 1:
                A("s_branch K_vd")
        A.label("K_vd")
        self.lds_set_w(F_KDONE, 3, 4)
        A("s_setprio 0")
        self.stamp(1)
        if self.o["so"]:
            A("s_waitcnt vmcnt(0)")
            A("s_branch L_fin")
            return
        self.lane_addr(5, 4, [(4, 2, 6), (0, 2, 4), (2, 2, 2)])
        A(f"s_lshl_b32 {T[3]}, {sW}, 10")
        A(f"v_add_u32 v5, {T[3]}, v5")
        A(f"s_lshl_b32 {T[3]}, {sW}, 5")
        A("v_lshlrev_b32 v6, 3, v1")
        A(f"v_add_u32 v6, {T[3]}, v6")
        if self.o["sq"]:
            self.sqp()
        self.lane_addr(3, 4, [(0, 2, 8), (2, 1, 6), (4, 2, 4)])
        self.poll([f"ds_read_b128 {v(8+4*u,4)}, v3 offset:{QL+128*u}" for u in range(2)], list(range(8, 16)), 4, lds=True)
        A("s_setprio 3")
        self.stamp(2)
        dbuf = [16, 20, 32, 36]
        pend = []
        for dl in range(16):
            jj, c = dl >> 2, dl & 3
            if dl % 2 == 0:
                A(f"s_waitcnt vmcnt({28-2*dl})")
            d = dbuf[dl & 3]
            for uu in range(2):
                A(f"v_mfma_f32_16x16x32_bf16 {v(d,4)}, {v(KB+8*dl+4*uu,4)}, {v(8+4*uu,4)}, " + ("0" if uu == 0 else v(d, 4)))
            cur = []
            for rho in range(2):
                own, oth = (d + 2 * rho, d + 2 * rho + 1) if c % 2 == 0 else (d + 2 * rho + 1, d + 2 * rho)
                ror = 12 if c % 2 == 0 else 4
                cur.append(f"v_add_f32_dpp v{24+2*jj+rho}, v{oth}, v{own} row_ror:{ror} row_mask:0xf bank_mask:{1<<c:#x}")
            pend.append(cur)
            if len(pend) > 2:
                for l in pend.pop(0):
                    A(l)
        for cur in pend:
            for l in cur:
                A(l)
        self.stamp(3)
        for e in range(8):
            self.rbf(24 + e, 24 + e)
        for e in range(8):
            A(f"v_mul_f32 v{24+e}, {f32(0.08838834764831845)}, v{24+e}")
        for e in range(8):
            self.rbf(24 + e, 24 + e)
        A("v_max3_f32 v32, v24, v25, v26")
        A("v_max3_f32 v33, v27, v28, v29")
        A("v_max3_f32 v32, v32, v30, v31")
        A("v_max_f32 v32, v32, v33")
        self.allred("v_max_f32", 32, 34)
        for e in range(8):
            A(f"v_sub_f32 v{24+e}, v{24+e}, v32")
        for e in range(8):
            A(f"v_mul_f32 v{24+e}, {f32(LOG2E)}, v{24+e}")
        for e in range(8):
            A(f"v_exp_f32 v{24+e}, v{24+e}")
        for p in range(4):
            A(f"v_cvt_pk_bf16_f32 v{8+p}, v{24+2*p}, v{25+2*p}")
        for p in range(4):
            A(f"v_min_u32 v{8+p}, 0xfffffffe, v{8+p}")
        for jj in range(4):
            A(f"ds_write_b32 v5, v{8+jj} offset:{PL+256*jj}")
        self.stamp(4)
        A("v_add_f32 v33, v24, v25")
        A("v_add_f32 v34, v26, v27")
        A("v_add_f32 v35, v28, v29")
        A("v_add_f32 v36, v30, v31")
        A("v_add_f32 v33, v33, v34")
        A("v_add_f32 v35, v35, v36")
        A("v_add_f32 v33, v33, v35")
        self.allred("v_add_f32", 33, 34)
        A("v_min_u32 v32, 0xfffffffe, v32")
        A("v_min_u32 v33, 0xfffffffe, v33")
        A("s_mov_b64 exec, 15")
        A(f"ds_write_b64 v6, v[32:33] offset:{MLL}")
        A(f"s_cmp_gt_u32 {sW}, {1 if self.o['t1'] else 0}")
        A("s_cbranch_scc1 L_fin")
        A("s_mov_b64 exec, -1")
        A("s_setprio 1")
        A("v_lshlrev_b32 v9, 2, v1")
        if self.o["t1"]:
            A(f"s_cmp_eq_u32 {sW}, 0")
            A("s_cbranch_scc1 K_m0")
            A(f"s_cmp_lt_u32 {sJ}, 16")
            A("s_cbranch_scc1 L_fin")
            A("s_branch K_ms")
            A.label("K_m0")
        self.mlx()
        A("s_branch L_fin")

    def pmask(self, P, PM):
        return [f"v_mov_b32_dpp v{PM+4*g+i}, v{P+i} quad_perm:[0,1,2,3] row_mask:0xf bank_mask:{1<<g:#x}"
                for g in range(4) for i in range(4)]

    def pv(self, buf, PM, first=False, fill=(), waits=False, ACC=24):
        A = self.A
        fill = list(fill)
        for t in range(8):
            a = ACC + 4 * (t >> 2)
            if waits:
                A(f"s_waitcnt lgkmcnt({7-t})")
            A(f"v_mfma_f32_16x16x32_bf16 {v(a,4)}, {v(PM+4*(t&3),4)}, {v(buf+4*t,4)}, " +
              ("0" if first and t & 3 == 0 else v(a, 4)))
            for l in fill[2 * t:2 * t + 2]:
                A(l)

    def vread(self, buf, off, hfs=(0, 1), TA=64):
        for t in range(8):
            for hf in hfs:
                self.A(f"ds_read_b64_tr_b16 {v(buf+4*t+2*hf,2)}, v{TA+t} offset:{off+4096*hf}")

    def vwave(self):
        A = self.A
        D = self.o["vdepth"] or self.o["depth"]
        VB = 72
        A.label("L_v")
        if self.o["vds"]:
            A("s_memrealtime s[64:65]")
        A("v_lshlrev_b32 v2, 4, v1")
        for r in range(4, 8):
            A(f"v_mov_b32 v{r}, -1")
        A(f"s_mul_i32 {T[3]}, {sW}, 5120")
        A(f"v_add_u32 v3, {T[3]}, v2")
        for i in range(5):
            A(f"ds_write_b128 v3, v[4:7] offset:{SM+1024*i}")
        A(f"s_lshl_b32 {T[3]}, {sJ}, 2")
        A(f"s_add_u32 {T[3]}, {T[3]}, {sW}")
        A(f"s_mul_i32 {T[3]}, {T[3]}, {4096 if self.o['nl'] else 3072}")
        A(f"s_add_u32 {T[3]}, {T[3]}, {sG}")
        A(f"s_and_b32 {T[5]}, {sJ}, 1")
        A(f"s_lshl_b32 {T[6]}, {sX}, 1")
        A(f"s_add_u32 {T[5]}, {T[5]}, {T[6]}")
        A(f"s_lshl_b32 {T[6]}, {T[5]}, 10")
        A(f"s_add_u32 {T[6]}, {T[6]}, {WS_MOD+64*128:#x}")
        A(f"s_lshl_b32 {T[5]}, {T[5]}, 9")
        A(f"s_lshr_b32 {T[7]}, {sJ}, 1")
        A(f"s_lshl_b32 {T[7]}, {T[7]}, 14")
        A(f"s_add_u32 {T[5]}, {T[5]}, {T[7]}")
        A(f"s_add_u32 {T[5]}, {T[5]}, {WS_MP:#x}")
        self.lane_addr(8, 9, [(5, 1, 13), (0, 5, 4)])
        A("s_waitcnt lgkmcnt(0)")
        self.srd("WS", "ws", WS_SIZE)
        if self.o["pret"]:
            self.srd("DBG", "dbg", 256)
            A(f"s_cmp_lg_u32 {sW}, {self.o['pret']-1}")
            A("s_cbranch_scc1 V_npt")
            A("s_mov_b64 exec, 1")
            A(f"buffer_load_dword v10, v2, {DBG}, 0 offen offset:192")
            A("s_mov_b64 exec, -1")
            A.label("V_npt")
        A(f"s_cmp_ge_u32 {sJ}, {0 if self.o['nojan'] else 4}")
        A("s_cbranch_scc1 V_noj")
        A(f"s_cmp_lg_u32 {sW}, 0")
        A("s_cbranch_scc1 V_j1")
        A(f"buffer_store_dwordx4 v[4:7], v8, {WS}, {T[5]} offen sc1")
        A.label("V_j1")
        A(f"s_cmp_lg_u32 {sW}, 1")
        A("s_cbranch_scc1 V_j2")
        A(f"buffer_store_dwordx4 v[4:7], v2, {WS}, {T[6]} offen sc1")
        A.label("V_j2")
        if self.o["mx"]:
            A(f"s_cmp_lt_u32 {sW}, 2")
            A("s_cbranch_scc1 V_j3")
            A(f"s_lshl_b32 {T[6]}, {sX}, 3")
            A(f"s_add_u32 {T[6]}, {T[6]}, {sJ}")
            A(f"s_lshl_b32 {T[6]}, {T[6]}, 1")
            A(f"s_add_u32 {T[6]}, {T[6]}, {sW}")
            A(f"s_lshl_b32 {T[6]}, {T[6]}, 10")
            A(f"s_add_u32 {T[6]}, {T[6]}, {WS_XC-0x800:#x}")
            A(f"buffer_store_dwordx4 v[4:7], v2, {WS}, {T[6]} offen sc1")
            if self.o["mx"] == 2:
                A(f"s_cmp_ge_u32 {sJ}, 2")
                A("s_cbranch_scc1 V_j3")
                A(f"s_add_u32 {T[6]}, {T[6]}, 0x2000")
                A(f"buffer_store_dwordx4 v[4:7], v2, {WS}, {T[6]} offen sc1")
            A.label("V_j3")
        for i in range(4 if self.o["nl"] else 3):
            A(f"buffer_store_dwordx4 v[4:7], v2, {WS}, {T[3]} offen offset:{1024*i} sc1")
        A.label("V_noj")
        A("s_barrier")
        self.srd("DBG", "dbg", 256)
        self.srd("SA_", "v", 0x8000000)
        self.stamp_init()
        A(f"s_cmp_ge_u32 {sJ}, {0 if self.o['so'] == 1 else 4}")
        A("s_cbranch_scc1 V_noj2")
        A("s_waitcnt vmcnt(0)")
        self.lds_set_w(F_J2, 3, 8)
        A(f"s_cmp_lg_u32 {sW}, 0")
        A("s_cbranch_scc1 V_noj2")
        self.lds_wait(F_J2, 4, 3, 8)
        if self.o["pol"] == 4:
            self.lds_wait(F_VT, 4, 3, 8)
            A("v_sub_u32 v8, v8, v9")
            A("v_sub_u32 v10, v10, v11")
            for r in (8, 10):
                A(f"v_add_u32 v{r}, 16, v{r}")
                A(f"v_ashrrev_i32 v{r}, 5, v{r}")
                A(f"v_med3_i32 v{r}, v{r}, -1, 1")
            A("v_add_u32 v12, v8, v10")
            A("v_sub_u32 v9, 3, v12")
            A("v_add_u32 v8, 3, v12")
            A(f"s_cmp_ge_u32 {sX}, 4")
            A("s_cselect_b64 vcc, -1, 0")
            A("v_cndmask_b32 v8, v8, v9, vcc")
        if self.o["pol"] in (1, 2):
            self.lds_wait(F_VT, 4, 3, 8)
            A("v_cmp_ge_u32 vcc, v8, v9")
            A("v_cndmask_b32 v12, 0, 1, vcc")
            A("v_cmp_ge_u32 vcc, v10, v11")
            A("v_addc_co_u32 v12, vcc, 0, v12, vcc")
            A("v_sub_u32 v9, 3, v12")
            A("v_add_u32 v8, 1, v12")
            A(f"s_cmp_ge_u32 {sX}, 4")
            A("s_cselect_b64 vcc, -1, 0")
            A("v_cndmask_b32 v8, v8, v9, vcc")
        self.stamp(8)
        A(f"s_lshl_b32 {T[3]}, {sX}, 2")
        A(f"s_add_u32 {T[3]}, {T[3]}, {sJ}")
        A(f"s_lshl_b32 {T[3]}, {T[3]}, 2")
        A("v_mov_b32 v3, 0")
        A("s_mov_b64 exec, 1")
        A(f"buffer_store_dword v8, v3, {DBG}, {T[3]} offen sc1")
        if self.o["pol"] == 5:
            self.lds_wait(F_VT, 4, 13, 8)
            A("v_cmp_ge_u32 vcc, v8, v9")
            A("v_cndmask_b32 v12, 0, 1, vcc")
            A("v_cmp_ge_u32 vcc, v10, v11")
            A("v_addc_co_u32 v12, vcc, 0, v12, vcc")
            A("v_sub_u32 v9, 3, v12")
            A("v_add_u32 v8, 1, v12")
            A(f"s_cmp_ge_u32 {sX}, 4")
            A("s_cselect_b64 vcc, -1, 0")
            A("v_cndmask_b32 v8, v8, v9, vcc")
            A(f"buffer_store_dword v8, v3, {DBG}, {T[3]} offen offset:128 sc1")
        A("s_mov_b64 exec, -1")
        A.label("V_noj2")
        A(f"s_lshl_b32 {T[4]}, {sW}, 10")
        A(f"s_cmp_eq_u32 {sW}, 1")
        A("s_cbranch_scc1 V_clr")
        A(f"s_cmp_lg_u32 {sW}, 0")
        A("s_cbranch_scc1 V_nodbg")
        A(f"s_sub_u32 {T[3]}, {sJ}, 4")
        A(f"s_cmp_lt_u32 {T[3]}, {0 if self.o['so'] == 1 else self.o['jfgo']-4}")
        A(f"s_cselect_b32 {T[3]}, {(F_WL if self.o['jt'] else F_WF if self.o['jfw'] and not self.o['so'] else F_GI)-F_WF}, {F_KHALF-F_WF}")
        if self.o["jt"] == 2:
            A(f"s_cmp_eq_u32 {sJ}, 7")
            A(f"s_cselect_b32 {T[3]}, {F_GI-F_WF}, {T[3]}")
        A(f"v_mov_b32 v3, {T[3]}")
        self.poll([f"ds_read_b32 v8, v3 offset:{F_WF}"], [8], 9, lds=True)
        A.label("V_early")
        L, Dn = A.newlabel("P"), A.newlabel("PD")
        A(f"s_mov_b32 {sCNT}, {LIM_G}")
        A("s_mov_b64 exec, 0xff")
        if self.o["pol"] == 5:
            A(f"s_cmp_ge_u32 {sJ}, 16")
            A("s_cselect_b32 exec_lo, 0xffff, exec_lo")
        if self.o["nojan"] or self.o["so"] == 1:
            A(f"s_branch {Dn}")
        if self.o["sjf"]:
            g = " glc" if self.o["sjf"] == 2 else ""
            A(f"s_cmp_ge_u32 {sJ}, 16")
            A(f"s_cbranch_scc1 {L}")
            A(f"s_load_dwordx16 s[44:59], s[36:37], 0{g}")
            A(f"s_load_dwordx8 s[60:67], s[36:37], 64{g}")
            A(f"s_load_dwordx4 s[68:71], s[36:37], 96{g}")
            A(f"s_load_dwordx4 s[96:99], s[36:37], 112{g}")
            if self.o["sjf"] == 3:
                A(f"buffer_load_dwordx4 v[8:11], v2, {DBG}, 0 offen sc1")
                A(f"v_mov_b32 v3, {F_JF:#x}")
            else:
                for r in range(8, 12):
                    A(f"v_mov_b32 v{r}, 1")
            A("s_waitcnt lgkmcnt(0)")
            for r in list(range(46, 72, 2)) + [96, 98]:
                A(f"s_and_b64 s[44:45], s[44:45], s[{r}:{r+1}]")
            A("s_and_b32 s44, s44, s45")
            if self.o["sjf"] == 3:
                A("s_cbranch_scc0 V_jw")
                A("ds_write_b32 v3, v3")
                A("s_waitcnt vmcnt(0)")
                A(f"s_branch {Dn}")
            else:
                A(f"s_cbranch_scc1 {Dn}")
        A.label(L)
        A(f"buffer_load_dwordx4 v[8:11], v2, {DBG}, 0 offen sc1")
        A.label("V_jw")
        A("s_waitcnt vmcnt(0)")
        A("v_min3_u32 v12, v8, v9, v10")
        A("v_min_u32 v12, v12, v11")
        A("v_cmp_eq_u32 vcc, 0, v12")
        A(f"s_cbranch_vccz {Dn}")
        A(f"s_sub_u32 {sCNT}, {sCNT}, 1")
        A(f"s_cbranch_scc0 {L}")
        A.label(Dn)
        A(f"v_mov_b32 v3, {F_JF:#x}")
        if self.o["pol"] in (1, 2, 4, 5):
            A("v_add3_u32 v8, v8, v9, v10")
            A("v_add_u32 v8, v8, v11")
            for sh in (1, 2, 4):
                A(f"v_add_u32_dpp v8, v8, v8 row_shr:{sh} row_mask:0xf bank_mask:0xf bound_ctrl:0")
            A("v_min_u32 v8, 0xffff, v8")
            A("s_mov_b64 exec, 0x80")
            if self.o["pol"] == 5:
                A(f"s_cmp_ge_u32 {sJ}, 16")
                A("s_cselect_b32 exec_lo, 0x8000, exec_lo")
            A("ds_write_b32 v3, v8")
            A("s_mov_b64 exec, 1")
        else:
            A("s_mov_b64 exec, 1")
            A("ds_write_b32 v3, v3")
        self.stamp(9)
        A(f"s_getreg_b32 {T[5]}, hwreg(HW_REG_XCC_ID)")
        A(f"s_and_b32 {T[5]}, {T[5]}, 0xf")
        A(f"s_lshl_b32 {T[3]}, {sJ}, 2")
        A(f"s_add_u32 {T[3]}, {T[3]}, {sG}")
        A(f"s_add_u32 {T[3]}, {T[3]}, {G_XT:#x}")
        A(f"v_mov_b32 v8, {T[5]}")
        A(f"buffer_store_dword v8, v2, {WS}, {T[3]} offen sc1")
        if self.o["pol"] == 3:
            A(f"s_cmp_ge_u32 {sJ}, 4")
            A("s_cbranch_scc1 V_nv")
            self.lds_wait(F_VT, 4, 3, 8)
            A("v_cmp_ge_u32 vcc, v8, v9")
            A("v_cndmask_b32 v12, 0, 1, vcc")
            A("v_cmp_ge_u32 vcc, v10, v11")
            A("v_addc_co_u32 v12, vcc, 0, v12, vcc")
            A("v_sub_u32 v9, 2, v12")
            A(f"s_cmp_ge_u32 {sX}, 4")
            A("s_cselect_b64 vcc, -1, 0")
            A("v_cndmask_b32 v8, v12, v9, vcc")
            A(f"s_lshl_b32 {T[3]}, {sX}, 2")
            A(f"s_add_u32 {T[3]}, {T[3]}, {sJ}")
            A(f"s_lshl_b32 {T[3]}, {T[3]}, 2")
            A(f"s_add_u32 {T[3]}, {T[3]}, {WS_G+G_XT+0x80:#x}")
            A(f"buffer_store_dword v8, v2, {WS}, {T[3]} offen sc1")
            A.label("V_nv")
        A("s_mov_b64 exec, -1")
        A("s_branch V_nodbg")
        A.label("V_clr")
        A(f"s_lshl_b32 {T[7]}, {sX}, 2")
        A(f"s_add_u32 {T[7]}, {T[7]}, {sB}")
        A(f"s_lshl_b32 {T[7]}, {T[7]}, 3")
        A(f"s_add_u32 {T[7]}, {T[7]}, {sS}")
        A(f"s_lshl_b32 {T[7]}, {T[7]}, 11")
        A(f"s_add_u32 {T[7]}, {T[7]}, {WS_OP:#x}")
        if not self.o["noop"]:
            A(f"buffer_store_dwordx4 v[4:7], v2, {WS}, {T[7]} offen sc1")
            A(f"buffer_store_dwordx4 v[4:7], v2, {WS}, {T[7]} offen offset:1024 sc1")
        A("s_waitcnt vmcnt(0)")
        A(f"v_mov_b32 v3, {F_CLR:#x}")
        A("ds_write_b32 v3, v3")
        A.label("V_nodbg")
        self.stamp(1)
        self.kv_base(1)
        A(f"s_lshl_b32 {T[4]}, {sW}, 10")
        A(f"s_lshl_b32 {T[10]}, {sW}, 14")
        A(f"s_add_u32 {T[10]}, {T[10]}, {W0:#x}")
        for r in range(32, 64):
            A(f"v_mov_b32 v{r}, 0")
        self.lane_addr(3, 4, [(4, 1, 5)])
        A("v_xor_b32 v4, v2, v3")
        for i in (1, 2, 3):
            A(f"v_xor_b32 v{4+i}, {i<<6}, v4")
        self.lane_addr(64, 3, [(2, 2, 10), (4, 2, 8), (2, 2, 6), (4, 1, 5), (0, 2, 3)])
        A(f"s_add_u32 {T[3]}, {T[10]}, 0x10000")
        A(f"v_add_u32 v64, {T[3]}, v64")
        for t in range(1, 8):
            A(f"v_xor_b32 v{64+t}, {t<<5}, v64")
        self.lds_wait_w(F_KDONE, 3, 8)
        A("s_setprio 3")
        self.stamp(2)
        variants = [D]
        i0 = 0
        if self.o["vds"]:
            ds, ts = str(self.o["vds"]), str(self.o["vts"])
            ds = "0" * (len(ds) & 1) + ds
            ts = "0" * (-len(ts) % 3) + ts
            variants = [int(ds[i:i+2]) for i in range(0, len(ds), 2)]
            ths = [10 * int(ts[i:i+3]) for i in range(0, len(ts), 3)]
            assert len(ths) == len(variants) - 1
            A("s_memrealtime s[66:67]")
            self.tile_off(0)
            A(f"s_add_u32 m0, {T[10]}, 0x10000")
            for i in range(4):
                A(f"buffer_load_dwordx4 v{4+i}, {SA_}, {T[2]} offen offset:{1024*i} nt lds")
            i0 = 4
            A("s_waitcnt lgkmcnt(0)")
            A("s_sub_u32 s66, s66, s64")
            for vi in range(len(ths), 0, -1):
                A(f"s_cmp_ge_u32 s66, {ths[vi-1]}")
                A(f"s_cbranch_scc1 V_v{vi}")
        elif self.o["vdb"]:
            variants = [D, self.o["vdb"]]
            A(f"s_sub_u32 {T[3]}, {sJ}, {self.o['blo']}")
            A(f"s_cmp_lt_u32 {T[3]}, {self.o['bhi']-self.o['blo']}")
            A("s_cbranch_scc1 V_v1")
            A(f"s_cmp_ge_u32 {sX}, {self.o['lxv']}")
            A("s_cbranch_scc1 V_v1")
        for vi, D in enumerate(variants):
            A.label(f"V_v{vi}")
            done = 0
            for i in range(i0, 32):
                if i == 16 and not self.o["so"]:
                    self.lds_wait(F_WF, 4, 3, 8)
                if i & 3 == 0:
                    self.tile_off(i >> 2)
                    A(f"s_add_u32 m0, {T[10]}, {(0x10000 + 1024*i) if i < 16 else 1024*(i-16):#x}")
                if i >= D and i < 32 - self.o["vlast"]:
                    A(f"s_waitcnt vmcnt({D-1})")
                A(f"buffer_load_dwordx4 v{4+(i&3)}, {SA_}, {T[2]} offen offset:{1024*(i&3)} nt lds")
                for fl, key in ((F_VQ, "vq"), (F_VM, "vm")):
                    if i == self.o[key]:
                        A(f"v_mov_b32 v3, {fl:#x}")
                        A("ds_write_b32 v3, v3")
                if self.o["vin"] and not self.o["so"] and i >= D + 3 and (i - D) & 3 == 3 and i < 32 - self.o["vlast"]:
                    hb = (i - D) >> 2
                    if hb == 4:
                        for t in range(8):
                            A(f"v_subrev_u32 v{64+t}, 0x10000, v{64+t}")
                    if hb < 6:
                        A("s_waitcnt lgkmcnt(0)")
                        self.vread(VB + 32 * (hb >> 1), 8192 * ((hb >> 1) & 1), (hb & 1,))
                        done = hb + 1
            self.stamp(3)
            if self.o["so"]:
                A("s_waitcnt vmcnt(0)")
                A("s_branch L_fin")
                continue
            for hb in range(done, 6):
                if hb == 4:
                    for t in range(8):
                        A(f"v_subrev_u32 v{64+t}, 0x10000, v{64+t}")
                A(f"s_waitcnt vmcnt({28-4*hb}) lgkmcnt(0)")
                self.vread(VB + 32 * (hb >> 1), 8192 * ((hb >> 1) & 1), (hb & 1,))
            if vi < len(variants) - 1:
                A("s_branch V_vd")
        if self.o["so"]:
            return
        A.label("V_vd")
        self.lane_addr(3, 4, [(4, 2, 6), (0, 2, 4)])
        A(f"v_add_u32 v3, {T[4]}, v3")
        self.poll([f"ds_read_b128 {v(8+4*b,4)}, v3 offset:{PL+256*b}" for b in range(4)], list(range(8, 24)), 4, lds=True)
        self.stamp(4)
        for l in self.pmask(8, 32):
            A(l)
        self.pv(VB, 32, True, self.pmask(12, 48))
        self.pv(VB + 32, 48, False, self.pmask(16, 32))
        self.pv(VB + 64, 32, False, self.pmask(20, 48))
        self.stamp(5)
        A(f"s_lshl_b32 {T[11]}, {sW}, 11")
        A(f"v_add_u32 v3, {T[11]}, v2")
        A("s_waitcnt vmcnt(4)")
        self.vread(VB, 8192, (0,))
        A("s_waitcnt vmcnt(0)")
        self.stamp(6)
        A("s_waitcnt lgkmcnt(0)")
        self.vread(VB, 8192, (1,))
        self.pv(VB, 48, waits=True)
        A(f"ds_write_b128 v3, v[24:27] offset:{RL}")
        A(f"ds_write_b128 v3, v[28:31] offset:{RL+1024}")
        self.stamp(7)
        A("s_branch L_fin")

    def build(self):
        A = self.A
        if self.o["stamps"] or self.o["padto"]:
            A("s_memrealtime s[100:101]")
        A("s_cmp_ge_u32 s2, 256")
        A("s_cbranch_scc1 L_end")
        A("s_load_dwordx16 s[4:19], s[0:1], 0")
        A("s_load_dwordx8 s[20:27], s[0:1], 64")
        A("s_load_dwordx4 s[28:31], s[0:1], 96")
        A("v_and_b32 v1, 63, v0")
        A("v_lshrrev_b32 v2, 6, v0")
        A("v_readfirstlane_b32 s3, v2")
        A(f"s_and_b32 {sX}, s2, 7")
        A(f"s_lshr_b32 {sJ}, s2, 3")
        A(f"s_and_b32 {sB}, {sJ}, 3")
        A(f"s_lshr_b32 {sS}, {sJ}, 2")
        A(f"s_add_u32 {sG}, {sX}, 1")
        A(f"s_lshl_b32 {sG}, {sG}, 16")
        A(f"s_mov_b64 {FULL}, -1")
        A(f"s_mov_b32 {sMODE}, 0")
        A(f"s_and_b32 {sW}, s3, 3")
        A("s_cmp_ge_u32 s3, 8")
        A("s_cbranch_scc1 L_v")
        A("s_cmp_ge_u32 s3, 4")
        A("s_cbranch_scc1 L_k")
        self.chain()
        self.kwave()
        self.vwave()
        for Ls, stores, Lb in self.deferred:
            A.label(Ls)
            for s in stores:
                A(s)
            A(f"s_branch {Lb}")
        A.label("L_fin")
        if self.o["padto"]:
            A("s_cmp_lg_u32 s2, 0")
            A("s_cbranch_scc1 PAD_e")
            A("s_cmp_lg_u32 s3, 0")
            A("s_cbranch_scc1 PAD_e")
            A(f"s_mov_b32 {T[2]}, 100000")
            A.label("PAD_l")
            A(f"s_memrealtime s[80:81]")
            A("s_waitcnt lgkmcnt(0)")
            A(f"s_sub_u32 {T[2]}, {T[2]}, 1")
            A("s_cbranch_scc1 PAD_e")
            A("s_sub_u32 s80, s80, s100")
            A(f"s_cmp_lt_u32 s80, {self.o['padto']}")
            A("s_cbranch_scc1 PAD_l")
            A.label("PAD_e")
            A("s_nop 0")
        self.stamp_flush()
        A.label("L_end")
        A("s_endpgm")
        body = A.finish()
        ref = open(f"cdna_kernels/{KNAME}.s.ref").read().split("\n")
        head = []
        for l in ref:
            if l.startswith("; @launch"):
                head.append(f"; @launch grid=(256,1,1) block=(768,1,1) lds={LDS_SIZE}")
            elif l.startswith(";"):
                head.append(l)
            else:
                break
        out = head + ['.amdgcn_target "amdgcn-amd-amdhsa--gfx950"', ".text", f".globl {KNAME}_kernel", ".p2align 8",
                      f".type {KNAME}_kernel,@function", f"{KNAME}_kernel:"] + body
        out += ['.section .rodata,"a"', ".p2align 6", f".amdhsa_kernel {KNAME}_kernel",
                "  .amdhsa_next_free_vgpr 168", "  .amdhsa_next_free_sgpr 102", "  .amdhsa_accum_offset 168",
                "  .amdhsa_group_segment_fixed_size 0", "  .amdhsa_kernarg_size 112", "  .amdhsa_user_sgpr_count 2",
                "  .amdhsa_user_sgpr_kernarg_segment_ptr 1", "  .amdhsa_system_sgpr_workgroup_id_x 1",
                ".end_amdhsa_kernel"]
        return "\n".join(out) + "\n"


def gen(**o):
    return Gen(**o).build()


if __name__ == "__main__":
    o = {}
    out = f"cdna_kernels/{KNAME}.s"
    for a in sys.argv[1:]:
        k, val = a.split("=")
        if k == "out":
            out = val
        else:
            o[k] = int(val) if val.lstrip("-").isdigit() else val
    open(out, "w").write(gen(**o))
    print("wrote", out)
```
